```python
import torch

def _softmax(x, axis=-1):
    return torch.softmax(x, dim=axis)
def _gelu(x):
    return torch.nn.functional.gelu(x, approximate="tanh")
def _silu(x):
    return torch.nn.functional.silu(x)
def _sigmoid(x):
    return torch.sigmoid(x)
def _layernorm(x, axis=-1, eps=1e-5):
    m = x.mean(dim=axis, keepdim=True)
    v = x.var(dim=axis, keepdim=True, unbiased=False)
    return (x - m) / torch.sqrt(v + eps)
def _scatter_add(tgt, idx, src, axis=0):
    return tgt.clone().index_add_(axis, idx, src)
def _segment_sum(src, seg, n):
    out = torch.zeros((n,) + src.shape[1:], dtype=src.dtype)
    return out.index_add_(0, seg, src)
def _pad(x, pw):
    flat = tuple(v for pair in reversed(pw) for v in pair)
    return torch.nn.functional.pad(x, flat)

kernel_name = 'parallel_sum__linear_attn_block__glu_gated_swiglu__prompt'

def setup_inputs():

    _w = (lambda a: (lambda t: t.to(torch.bfloat16) if t.is_floating_point() else t)(torch.as_tensor(a)))
    def _A_setup():
        B, S, D = 1, 2048, 576
        return {
            "x": _w((lambda *s: torch.randn(*s, dtype=torch.bfloat16) * 0.05)(B, S, D)),
            "wqkv": _w((lambda *s: torch.randn(*s, dtype=torch.bfloat16) * 0.05)(D, 3 * D)),
            "wo": _w((lambda *s: torch.randn(*s, dtype=torch.bfloat16) * 0.05)(D, D)),
        }
    _A_in = _A_setup()

    def _B_setup():
        B, S, D, F = 1, 2048, 576, 4608
        return {
            "x": _w((lambda *s: torch.randn(*s, dtype=torch.bfloat16) * 0.05)(B, S, D)),
            "w1": _w((lambda *s: torch.randn(*s, dtype=torch.bfloat16) * 0.2)(D, F) * (2.0 / D) ** 0.5),
            "w3": _w((lambda *s: torch.randn(*s, dtype=torch.bfloat16) * 0.2)(D, F) * (2.0 / D) ** 0.5),
            "w2": _w((lambda *s: torch.randn(*s, dtype=torch.bfloat16) * 0.2)(F, D) * (2.0 / F) ** 0.5),
        }
    _B_in = _B_setup()

    return {
        "A_x": _A_in["x"],
        "A_wqkv": _A_in["wqkv"],
        "A_wo": _A_in["wo"],
        "B_x": _B_in["x"],
        "B_w1": _B_in["w1"],
        "B_w3": _B_in["w3"],
        "B_w2": _B_in["w2"],
    }

def reference(A_x, A_wqkv, A_wo, B_x, B_w1, B_w3, B_w2):
    def _A_ref(x, wqkv, wo):
        B, S, D = x.shape
        H = 32; Dh = D // H
        qkv = (lambda x, *d: x.permute(*d))((x @ wqkv).reshape(B, S, 3, H, Dh), 2, 0, 3, 1, 4)
        q, k, v = qkv[0], qkv[1], qkv[2]
        phi = lambda t: torch.where(t > 0, t + 1, torch.exp(t)) + 1e-6
        pq, pk = phi(q), phi(k)
        kv = torch.einsum("bhsd,bhse->bhde", pk, v)
        z = torch.einsum("bhsd->bhd", pk)
        num = torch.einsum("bhqd,bhde->bhqe", pq, kv)
        den = torch.einsum("bhqd,bhd->bhq", pq, z)[..., None] + 1e-6
        o = num / den
        return (lambda x, *d: x.permute(*d))(o, 0, 2, 1, 3).reshape(B, S, D) @ wo

    def _B_ref(x, w1, w3, w2):
        gate = torch.einsum("bsd,df->bsf", x, w1)
        up = torch.einsum("bsd,df->bsf", x, w3)
        h = _silu(gate) * up
        out = torch.einsum("bsf,fd->bsd", h, w2)
        return out

    x = A_x
    xn = _layernorm(x, axis=-1)
    return x + _A_ref(xn, A_wqkv, A_wo) + _B_ref(xn, B_w1, B_w3, B_w2)
```

```python
import re

TRANS = ("v_exp_f32", "v_rcp_f32", "v_rsq_f32", "v_sqrt_f32", "v_log_f32")


def vr(i, n=1, p="v"):
    return f"{p}{i}" if n == 1 else f"{p}[{i}:{i + n - 1}]"


def ar(i, n=1):
    return vr(i, n, "a")


def sr(i, n=1):
    return vr(i, n, "s")


_REG = re.compile(r"^(-|\|)?([vas])(\d+)\|?$|^(-)?([vas])\[(\d+):(\d+)\]$")


def regs_of(op):
    op = op.strip()
    if op in ("vcc", "exec", "m0", "scc"):
        return {op}
    m = _REG.match(op)
    if not m:
        return set()
    if m.group(2):
        return {m.group(2) + m.group(3)}
    return {m.group(5) + str(i) for i in range(int(m.group(6)), int(m.group(7)) + 1)}


class I:
    __slots__ = ("text", "cls", "cost", "tok", "needs", "R", "W", "AB", "C", "op", "dpp")

    def __init__(self, text, tok=None, needs=(), cost=None):
        self.text = text
        self.tok = tok
        self.needs = list(needs)
        t = text.split(";")[0].strip()
        self.R, self.W, self.AB, self.C = set(), set(), set(), set()
        self.dpp = False
        if t.endswith(":"):
            self.cls, self.op, self.cost = "label", "", 0
            return
        parts = t.split(None, 1)
        op = parts[0]
        self.op = op
        rest = parts[1] if len(parts) > 1 else ""
        ops, depth, cur = [], 0, ""
        for ch in rest:
            if ch == "[":
                depth += 1
            if ch == "]":
                depth -= 1
            if ch == "," and depth == 0:
                ops.append(cur.strip())
                cur = ""
            else:
                cur += ch
        if cur.strip():
            ops.append(cur.strip())
        mods = ""
        if ops:
            last = ops[-1].split(None, 1)
            ops[-1] = last[0]
            mods = last[1] if len(last) > 1 else ""
        rs = [regs_of(o) for o in ops]
        allr = set().union(*rs) if rs else set()
        if op.startswith("v_mfma"):
            self.cls, c = "mfma", 8
            self.W = rs[0]
            self.AB = rs[1] | rs[2]
            self.C = rs[3]
            self.R = self.AB | self.C
        elif op.startswith("ds_read"):
            self.cls, c = "ds", 4
            self.W, self.R = rs[0], rs[1]
        elif op.startswith("ds_"):
            self.cls, c = "ds", 8
            self.R = allr
        elif op.startswith("buffer_load") or op.startswith("global_load"):
            self.cls, c = "vmem", 24
            if " lds" in " " + mods:
                self.R = allr | {"m0"}
            else:
                self.W = rs[0]
                self.R = set().union(*rs[1:])
        elif op.startswith("buffer_") or op.startswith("global_"):
            self.cls, c = "vmem", 24
            self.R = allr
        elif op.startswith("s_waitcnt") or op in ("s_split",):
            self.cls, c = "wait", 4
        elif op == "s_nop":
            self.cls, c = "nop", 4 * (int(ops[0]) + 1)
        elif op == "s_barrier":
            self.cls, c = "bar", 8
        elif op.startswith("s_cbranch") or op in ("s_branch", "s_endpgm", "s_sleep", "s_setprio"):
            self.cls, c = "branch", 4
        elif op.startswith("s_load") or op.startswith("s_mem"):
            self.cls, c = "smem", 4
            self.W = rs[0]
            self.R = set().union(*rs[1:]) if len(rs) > 1 else set()
        elif op.startswith("s_cmp") or op.startswith("s_bitcmp"):
            self.cls, c = "salu", 4
            self.R = allr
        elif op.startswith("s_"):
            self.cls, c = "salu", 4
            self.W = rs[0]
            self.R = set().union(*rs[1:]) if len(rs) > 1 else set()
        elif op.startswith("v_"):
            base = op.replace("_e32", "").replace("_e64", "")
            self.cls, c = ("trans", 8) if base in TRANS else ("valu", 4)
            self.W = set(rs[0])
            self.R = set().union(*rs[1:]) if len(rs) > 1 else set()
            if base.startswith("v_fmac") or base.startswith("v_dot2c"):
                self.R |= rs[0]
            if base.startswith("v_permlane") or base.startswith("v_swap"):
                self.R, self.W = allr, allr
            if base.startswith("v_add_co") or base.startswith("v_addc_co") or base.startswith("v_sub_co"):
                self.W |= rs[1]
            if "quad_perm" in mods or "row_" in mods:
                self.dpp = True
        else:
            raise ValueError("unknown instr " + text)
        self.cost = c if cost is None else cost


def is_valu(i):
    return i.cls in ("valu", "trans")


class Sync:
    def __init__(self, vm=True, lg=True):
        self.vm, self.lg = vm, lg


def insert_waits(prog):
    out = []
    pos = {}
    n = {"vm": 0, "lg": 0}
    done = {"vm": 0, "lg": 0}
    cap = {"vm": 63, "lg": 15}
    for ins in prog:
        if isinstance(ins, Sync):
            parts = []
            if ins.vm:
                parts.append("vmcnt(0)")
                done["vm"] = n["vm"]
            if ins.lg:
                parts.append("lgkmcnt(0)")
                done["lg"] = n["lg"]
            out.append(I("s_waitcnt " + " ".join(parts)))
            continue
        want = {}
        for t in ins.needs:
            k, idx = pos[t]
            if idx >= done[k]:
                want[k] = max(want.get(k, -1), idx)
        if want:
            parts = []
            for k, idx in want.items():
                cnt = min(n[k] - 1 - idx, cap[k])
                parts.append(("vmcnt(%d)" if k == "vm" else "lgkmcnt(%d)") % cnt)
                done[k] = n[k] - cnt
            out.append(I("s_waitcnt " + " ".join(parts)))
        out.append(ins)
        k = {"vmem": "vm", "ds": "lg"}.get(ins.cls)
        assert ins.cls != "smem" or True
        if k:
            if ins.tok is not None:
                assert ins.tok not in pos, ins.tok
                pos[ins.tok] = (k, n[k])
            n[k] += 1
    return out


def states(i):
    if i.cls == "label":
        return 0
    if i.cls == "nop":
        return i.cost // 4
    return 1


def pad_hazards(prog, name=""):
    out = []
    pads = 0
    for ins in prog:
        need = 0
        dist = 0
        for prev in reversed(out):
            if dist >= 20:
                break
            req = 0
            pw_v = {r for r in prev.W if r[0] in "va" and r not in ("vcc",)}
            if prev.cls == "mfma":
                big = "32x32" in prev.op
                lat = 12 if big else 8
                if ins.cls == "mfma":
                    if ins.AB & prev.W:
                        req = max(req, lat)
                    if ins.C & prev.W and ins.C != prev.W:
                        req = max(req, lat - 2)
                    if (ins.W & prev.W) and not (ins.C == prev.W and ins.W == prev.W):
                        req = max(req, lat)
                elif is_valu(ins):
                    if (ins.R | ins.W) & prev.W:
                        req = max(req, lat)
                    if ins.W & prev.C:
                        req = max(req, 7 if big else 3)
                elif ins.cls in ("vmem", "ds"):
                    if (ins.R | ins.W) & prev.W:
                        req = max(req, lat)
            elif is_valu(prev):
                if ins.cls == "mfma" and ins.R & pw_v:
                    req = max(req, 2)
                if prev.cls == "trans" and ins.cls == "valu" and ins.R & pw_v:
                    req = max(req, 1)
                if is_valu(ins) and ins.dpp and ins.R & pw_v:
                    req = max(req, 2)
                if ins.op.startswith("v_permlane") and ins.R & pw_v:
                    req = max(req, 2)
                if ins.op.startswith("v_readfirstlane") or ins.op.startswith("v_readlane"):
                    if ins.R & pw_v:
                        req = max(req, 1)
                pw_s = {r for r in prev.W if r[0] == "s" or r == "vcc"}
                if pw_s:
                    if is_valu(ins) and ins.R & pw_s:
                        req = max(req, 2)
                    if ins.cls == "vmem" and ins.R & pw_s:
                        req = max(req, 5)
                    if ins.cls == "salu" and ins.R & pw_s:
                        req = max(req, 2)
            elif prev.cls == "vmem" and ("store" in prev.op) and ("x4" in prev.op or "x3" in prev.op):
                data = {r for r in prev.R if r[0] in "va"}
                if ins.W & data:
                    req = max(req, 2 if is_valu(ins) else 1)
            elif prev.cls == "salu" and "m0" in prev.W:
                if ins.cls == "vmem" and "m0" in ins.R:
                    req = max(req, 1)
            need = max(need, req - dist)
            dist += states(prev)
        if need > 0:
            out.append(I("s_nop %d" % (need - 1)))
            pads += 1
        out.append(ins)
    return out, pads


def weave(slots, items, free=8, maxcarry=0):
    streams = {}
    last = len(slots) - 1
    for it in items:
        streams.setdefault(it[2], []).append((min(it[0], last), min(it[1], last), it[2], it[3]))
    heads = {k: 0 for k in streams}
    for k, lst in streams.items():
        dl = 1 << 30
        for j in range(len(lst) - 1, -1, -1):
            dl = min(dl, lst[j][1])
            lst[j] = (lst[j][0], dl, lst[j][2], lst[j][3])
        for it in lst:
            assert it[0] <= it[1], ("target after deadline", k, it[0], it[1])
    out = []
    carry = 0

    def cost(x):
        return sum(i.cost for i in x) if isinstance(x, list) else x.cost

    def emit(x):
        if isinstance(x, list):
            out.extend(x)
        else:
            out.append(x)

    for idx, (pre, m) in enumerate(slots):
        for p in pre:
            out.append(p)
        out.append(m)
        nxt_pre = sum(getattr(p, "cost", 4) for p in slots[idx + 1][0]) if idx + 1 < len(slots) else 0
        if idx + 1 < len(slots) and slots[idx + 1][1].needs:
            nxt_pre += 4
        budget = free + carry - nxt_pre
        full = budget
        while True:
            cands = [streams[k][heads[k]] for k in streams if heads[k] < len(streams[k])]
            forced = [c for c in cands if c[1] <= idx]
            if forced:
                c = min(forced, key=lambda c: (c[1], c[0]))
            else:
                el = [c for c in cands if c[0] <= idx]
                if not el or budget <= 0:
                    break
                el.sort(key=lambda c: (c[0], c[1]))
                fit = [c for c in el if cost(c[3]) <= budget]
                if cost(el[0][3]) > free and budget >= full and budget >= free:
                    c = el[0]
                elif fit:
                    c = fit[0]
                else:
                    break
            emit(c[3])
            budget -= cost(c[3])
            heads[c[2]] += 1
        carry = max(min(budget, 0), -maxcarry)
    for k in streams:
        assert heads[k] == len(streams[k]), ("items left over", k, heads[k], len(streams[k]))
    return out


def finish(prog, name=""):
    prog = insert_waits(prog)
    prog, pads = pad_hazards(prog, name)
    return "\n".join(i.text for i in prog) + "\n", pads, len(prog)
```

```python
import struct
import sys
from asmlib import I, Sync, vr, ar, sr, weave, finish

NAME = "parallel_sum__linear_attn_block__glu_gated_swiglu__prompt"


def f32(x):
    return "0x%08x" % struct.unpack("<I", struct.pack("<f", x))[0]


L2E = 1.4426950408889634
LN2 = 0.6931471805599453

WS_BYTES = 0x10000000
XN_OFF = 0
H_OFF = 0x400000
KVP_OFF = 0x2000000
P_OFF = 0x2400000
P_STRIDE = 128 * 18 * 1024
NF = 162
HRB = NF * 1024

OPT = dict(st_sc1=True)
for a in sys.argv[1:]:
    if "=" in a:
        k, v = a.split("=")
        OPT[k] = int(v)

SC1 = " sc1" if OPT["st_sc1"] else ""


def srd(d, p, nbytes):
    return [I(f"s_mov_b32 s{d}, s{p}"), I(f"s_and_b32 s{d+1}, s{p+1}, 0xffff"),
            I(f"s_mov_b32 s{d+2}, {nbytes}"), I(f"s_mov_b32 s{d+3}, 0x20000")]


def L(text):
    return [I(t.strip()) for t in text.strip().split("\n") if t.strip()]


def k0():
    P = []
    P += L("""
    s_cmp_ge_u32 s2, 256
    s_cbranch_scc1 k0_end
    s_load_dwordx2 s[4:5], s[0:1], 0
    s_load_dwordx2 s[6:7], s[0:1], 72
    v_lshrrev_b32 v1, 5, v0
    v_and_b32 v2, 31, v0
    s_lshl_b32 s3, s2, 3
    v_add_u32 v3, s3, v1
    v_mul_u32_u24 v3, 1152, v3
    v_lshl_add_u32 v3, v2, 2, v3
    s_waitcnt lgkmcnt(0)
    """)
    P += srd(8, 4, 2048 * 1152)
    P += srd(12, 6, WS_BYTES)
    for j in range(9):
        P.append(I(f"buffer_load_dword v{8+j}, v3, s[8:11], 0 offen offset:{128*j}", tok=("x", j)))
    P += L("""
    v_lshrrev_b32 v4, 2, v2
    v_mul_u32_u24 v4, 144, v4
    v_lshl_add_u32 v4, v1, 4, v4
    v_and_b32 v5, 3, v2
    v_lshl_add_u32 v4, v5, 2, v4
    v_lshrrev_b32 v5, 3, v0
    v_and_b32 v6, 7, v0
    v_mul_u32_u24 v7, 144, v5
    v_lshl_add_u32 v7, v6, 4, v7
    v_lshlrev_b32 v5, 8, v5
    v_lshl_add_u32 v5, v6, 4, v5
    s_lshr_b32 s16, s2, 1
    s_mul_i32 s16, s16, 18432
    s_and_b32 s17, s2, 1
    s_lshl_b32 s17, s17, 7
    s_add_u32 s16, s16, s17
    """)
    if XN_OFF:
        P.append(I(f"s_add_u32 s16, s16, {XN_OFF}"))
    for j in range(9):
        P.append(I(f"v_lshlrev_b32 v{20+2*j}, 16, v{8+j}", needs=[("x", j)]))
        P.append(I(f"v_and_b32 v{21+2*j}, 0xffff0000, v{8+j}"))

    def tree(dst, srcs, tmp):
        out = []
        cur = list(srcs)
        t = tmp
        while len(cur) > 1:
            nxt = []
            for a in range(0, len(cur) - 1, 2):
                d = dst if len(cur) == 2 else t
                out.append(I(f"v_add_f32 v{d}, v{cur[a]}, v{cur[a+1]}"))
                nxt.append(d)
                t += 1
            if len(cur) % 2:
                nxt.append(cur[-1])
            cur = nxt
        return out

    def red32(r, t):
        return L(f"""
        v_add_f32 v{r}, v{r}, v{r} quad_perm:[1,0,3,2] row_mask:0xf bank_mask:0xf
        v_add_f32 v{r}, v{r}, v{r} quad_perm:[2,3,0,1] row_mask:0xf bank_mask:0xf
        v_add_f32 v{r}, v{r}, v{r} row_half_mirror row_mask:0xf bank_mask:0xf
        v_add_f32 v{r}, v{r}, v{r} row_mirror row_mask:0xf bank_mask:0xf
        v_mov_b32 v{t}, v{r}
        v_permlane16_swap_b32 v{r}, v{t}
        v_add_f32 v{r}, v{r}, v{t}
        """)

    P += tree(40, range(20, 38), 42)
    P += red32(40, 41)
    P.append(I(f"v_mul_f32 v40, {f32(1/576)}, v40"))
    for i in range(18):
        P.append(I(f"v_sub_f32 v{42+i}, v{20+i}, v40"))
    P.append(I("v_mul_f32 v60, v42, v42"))
    P.append(I("v_mul_f32 v61, v43, v43"))
    for i in range(2, 18):
        P.append(I(f"v_fmac_f32 v{60+(i&1)}, v{42+i}, v{42+i}"))
    P.append(I("v_add_f32 v60, v60, v61"))
    P += red32(60, 61)
    P += L(f"""
    v_mul_f32 v60, {f32(1/576)}, v60
    v_cvt_pk_bf16_f32 v61, v40, v60
    v_lshlrev_b32 v40, 16, v61
    v_and_b32 v60, 0xffff0000, v61
    v_add_f32 v60, {f32(1e-5)}, v60
    v_cvt_pk_bf16_f32 v60, v60, v60
    v_lshlrev_b32 v60, 16, v60
    v_sqrt_f32 v60, v60
    v_cvt_pk_bf16_f32 v60, v60, v60
    v_lshlrev_b32 v60, 16, v60
    v_rcp_f32 v60, v60
    v_mul_f32 v60, {f32(L2E)}, v60
    """)
    for j in range(9):
        a, b = 20 + 2 * j, 21 + 2 * j
        P += L(f"""
        v_sub_f32 v{a}, v{a}, v40
        v_sub_f32 v{b}, v{b}, v40
        v_cvt_pk_bf16_f32 v{8+j}, v{a}, v{b}
        v_lshlrev_b32 v{a}, 16, v{8+j}
        v_and_b32 v{b}, 0xffff0000, v{8+j}
        v_mul_f32 v{a}, v{a}, v60
        v_mul_f32 v{b}, v{b}, v60
        v_cvt_pk_bf16_f32 v{8+j}, v{a}, v{b}
        ds_write_b32 v4, v{8+j} offset:{8*144*j}
        """)
    P.append(Sync(vm=False))
    P.append(I("s_barrier"))
    P.append(I("ds_read_b128 v[20:23], v7", tok="r0"))
    P.append(I(f"ds_read_b128 v[24:27], v7 offset:{32*144}", tok="r1"))
    P += L("""
    v_readfirstlane_b32 s18, v0
    s_cmp_ge_u32 s18, 64
    s_cbranch_scc1 k0_skip
    """)
    P.append(I(f"ds_read_b128 v[28:31], v7 offset:{64*144}"))
    P.append(I("s_add_u32 s19, s16, 16384"))
    P.append(Sync(vm=False))
    P.append(I(f"buffer_store_dwordx4 v[28:31], v5, s[12:15], s19 offen{SC1}"))
    P.append(I("k0_skip:"))
    P.append(I("s_add_u32 s19, s16, 8192"))
    P.append(Sync(vm=False))
    P.append(I(f"buffer_store_dwordx4 v[20:23], v5, s[12:15], s16 offen{SC1}"))
    P.append(I(f"buffer_store_dwordx4 v[24:27], v5, s[12:15], s19 offen{SC1}"))
    P.append(I("k0_end:"))
    P.append(I("s_endpgm"))
    return P


NSPLIT = 5


def k3():
    PITCH = 1168
    P = L(f"""
    s_cmp_ge_u32 s2, 256
    s_cbranch_scc1 k3_end
    s_load_dwordx2 s[4:5], s[0:1], 0
    s_load_dwordx2 s[6:7], s[0:1], 72
    s_load_dwordx2 s[20:21], s[0:1], 56
    s_lshr_b32 s16, s2, 1
    s_and_b32 s17, s2, 1
    s_mul_i32 s18, s2, 9216
    s_add_u32 s18, s18, {P_OFF}
    v_lshlrev_b32 v1, 4, v0
    v_mul_u32_u24 v2, 1821, v0
    v_lshrrev_b32 v2, 16, v2
    v_mul_u32_u24 v3, 36, v2
    v_sub_u32 v3, v0, v3
    v_mul_u32_u24 v4, 1152, v2
    v_lshl_add_u32 v4, v3, 4, v4
    s_mul_i32 s19, s16, 18432
    s_mul_i32 s22, s17, 576
    s_add_u32 s19, s19, s22
    s_waitcnt lgkmcnt(0)
    """)
    P += srd(8, 4, 2048 * 1152)
    P += srd(12, 6, WS_BYTES)
    P += srd(24, 20, 2048 * 1152)
    for sp in range(NSPLIT):
        if sp:
            P.append(I(f"s_add_u32 s18, s18, {P_STRIDE}"))
        P.append(I(f"buffer_load_dwordx4 v[{8+4*sp}:{11+4*sp}], v1, s[12:15], s18 offen", tok=("p", sp)))
    P.append(I("buffer_load_dwordx4 v[32:35], v4, s[8:11], s19 offen", tok="x"))
    P += L(f"""
    v_and_b32 v5, 15, v0
    v_mul_u32_u24 v5, {PITCH}, v5
    v_lshrrev_b32 v6, 6, v0
    v_lshl_add_u32 v5, v6, 7, v5
    v_bfe_u32 v6, v0, 4, 2
    v_lshl_add_u32 v5, v6, 4, v5
    v_mul_u32_u24 v6, {PITCH}, v2
    v_lshl_add_u32 v6, v3, 5, v6
    """)
    for sp in range(NSPLIT):
        for d in range(4):
            src = 8 + 4 * sp + d
            nd = [("p", sp)] if d == 0 else []
            if sp == 0:
                P.append(I(f"v_lshlrev_b32 v{40+2*d}, 16, v{src}", needs=nd))
                P.append(I(f"v_and_b32 v{41+2*d}, 0xffff0000, v{src}"))
            else:
                P.append(I(f"v_lshlrev_b32 v48, 16, v{src}", needs=nd))
                P.append(I(f"v_and_b32 v49, 0xffff0000, v{src}"))
                P.append(I(f"v_add_f32 v{40+2*d}, v{40+2*d}, v48"))
                P.append(I(f"v_add_f32 v{41+2*d}, v{41+2*d}, v49"))
    P.append(I("ds_write_b128 v5, v[40:43]"))
    P.append(I("ds_write_b128 v5, v[44:47] offset:64"))
    P.append(Sync(vm=False))
    P.append(I("s_barrier"))
    P.append(I("ds_read_b128 v[40:43], v6", tok="r0"))
    P.append(I("ds_read_b128 v[44:47], v6 offset:16", tok="r1"))
    P.append(I(f"s_mov_b32 s23, {f32(LN2*LN2)}"))
    for d in range(4):
        P.append(I(f"v_lshlrev_b32 v{8+2*d}, 16, v{32+d}", needs=["x"]))
        P.append(I(f"v_and_b32 v{9+2*d}, 0xffff0000, v{32+d}"))
    for e in range(8):
        P.append(I(f"v_fmac_f32 v{8+e}, s23, v{40+e}", needs=["r0" if e < 4 else "r1"]))
    for d in range(4):
        P.append(I(f"v_cvt_pk_bf16_f32 v{32+d}, v{8+2*d}, v{9+2*d}"))
    P.append(I(f"buffer_store_dwordx4 v[32:35], v4, s[24:27], s19 offen{SC1}"))
    P.append(I("k3_end:"))
    P.append(I("s_endpgm"))
    return P


def lane_setup(vl, sw):
    return L(f"""
    v_and_b32 v{vl}, 63, v0
    v_lshrrev_b32 v0, 6, v0
    v_readfirstlane_b32 s{sw}, v0
    """)


def read_bases(vl, dst, nrange, t0, step=49152):
    P = L(f"""
    v_bfe_u32 v{t0}, v{vl}, 2, 3
    v_lshrrev_b32 v{t0+1}, 5, v{vl}
    v_lshlrev_b32 v{t0+1}, 10, v{t0+1}
    v_lshl_add_u32 v{t0+1}, v{t0}, 7, v{t0+1}
    v_and_b32 v{t0+2}, 3, v{vl}
    v_lshl_add_u32 v{t0+1}, v{t0+2}, 3, v{t0+1}
    v_lshrrev_b32 v{t0}, 1, v{t0}
    """)
    for b in range(4):
        P.append(I(f"v_xor_b32 v{t0+2}, {b}, v{t0}"))
        P.append(I(f"v_lshl_add_u32 v{dst+b}, v{t0+2}, 5, v{t0+1}"))
        for rg in range(1, nrange):
            P.append(I(f"v_add_u32 v{dst+4*rg+b}, {rg*step}, v{dst+b}"))
    return P


def dma_piece(vl, dst, t0):
    return L(f"""
    v_lshrrev_b32 v{t0}, 3, v{vl}
    v_and_b32 v{dst}, 6, v{t0}
    v_and_b32 v{t0+1}, 7, v{vl}
    v_xor_b32 v{dst}, v{dst}, v{t0+1}
    v_lshlrev_b32 v{dst}, 4, v{dst}
    """)


def mfma(d, a, b, c, needs=()):
    return I(f"v_mfma_f32_16x16x32_bf16 {vr(d,4)}, {a}, {b}, {c}", needs=needs)


def k2():
    VL, VW, VH0, VH1, RB, T0 = 1, 2, 3, 4, 8, 20
    ACC, WF = 64, 160
    NG = 5
    AHEAD = 3
    RING = 12
    NP = 17
    HD = 12
    sW, sLds, sSp, sWo, sH, sCol, sP = 16, 17, 18, 19, 20, 21, 22
    P = L(f"""
    s_cmp_ge_u32 s2, 240
    s_cbranch_scc1 k2_end
    s_load_dwordx2 s[4:5], s[0:1], 48
    s_load_dwordx2 s[6:7], s[0:1], 72
    s_load_dwordx2 s[28:29], s[0:1], 16
    s_and_b32 s23, s2, 7
    s_lshr_b32 s24, s2, 3
    s_mul_i32 s25, s24, 171
    s_lshr_b32 s25, s25, 9
    s_mul_i32 s26, s25, 3
    s_sub_u32 s26, s24, s26
    s_mul_i32 s23, s23, 10
    s_add_u32 s23, s23, s25
    s_lshr_b32 s{sSp}, s23, 4
    s_and_b32 s23, s23, 15
    """)
    P += lane_setup(VL, sW)
    P += dma_piece(VL, VW, T0)
    P += L(f"""
    s_lshl_b32 s27, s{sW}, 3
    v_add_u32 v{T0}, s27, v{T0}
    v_mul_u32_u24 v{T0}, 1152, v{T0}
    v_add_u32 v{VW}, v{VW}, v{T0}
    v_lshlrev_b32 v{VH0}, 4, v{VL}
    v_add_u32 v{VH1}, {HRB}, v{VH0}
    s_lshl_b32 s{sLds}, s{sW}, 10
    s_mul_i32 s{sWo}, s26, 384
    s_mul_i32 s{sCol}, s{sSp}, {32*36864}
    s_add_u32 s{sCol}, s{sCol}, s{sWo}
    s_lshl_b32 s27, s23, 3
    s_lshl_b32 s30, s{sW}, 1
    s_add_u32 s27, s27, s30
    s_mul_i32 s{sH}, s27, {HRB}
    s_lshl_b32 s30, s{sSp}, 15
    s_add_u32 s{sH}, s{sH}, s30
    s_add_u32 s{sH}, s{sH}, {H_OFF}
    s_mul_i32 s{sP}, s27, 18432
    s_mul_i32 s30, s26, 6144
    s_add_u32 s{sP}, s{sP}, s30
    s_mul_i32 s30, s{sSp}, {P_STRIDE}
    s_add_u32 s{sP}, s{sP}, s30
    s_add_u32 s{sP}, s{sP}, {P_OFF}
    s_waitcnt lgkmcnt(0)
    """)
    P += srd(8, 4, 4608 * 1152)
    P += srd(12, 6, WS_BYTES)
    P.append(I("s_and_b32 s29, s29, 0xffff"))

    def dma(st):
        its = []
        pre = []
        if st == 16:
            pre += L(f"""
            s_cmp_eq_u32 s{sSp}, 4
            s_cselect_b32 s8, s28, s8
            s_cselect_b32 s9, s29, s9
            s_cselect_b32 s10, {576*1152}, s10
            s_sub_u32 s30, s{sWo}, 36864
            s_cmp_eq_u32 s{sSp}, 4
            s_cselect_b32 s{sCol}, s30, s{sCol}
            """)
        if st:
            pre.append(I(f"s_add_u32 s{sCol}, s{sCol}, 36864"))
        for pn in range(3):
            m0 = (st % RING) * 12288 + pn * 4096 - 128 * pn
            its.append(pre + [I(f"s_add_u32 m0, s{sLds}, {m0}")])
            pre = []
            its.append(I(f"buffer_load_dwordx4 v{VW}, s[8:11], s{sCol} offen offset:{128*pn} lds", tok=("w", st, pn)))
        return its

    def hreg(st, r):
        return ar(((st % HD) * 2 + r) * 4, 4)

    def hload(st):
        its = []
        if st and st % 4 == 0:
            its.append(I(f"s_add_u32 s{sH}, s{sH}, 4096"))
        for r in range(2):
            its.append(I(f"buffer_load_dwordx4 {hreg(st,r)}, v{VH0+r}, s[12:15], s{sH} offen offset:{1024*(st%4)}",
                         tok=("h", st, r)))
        return its

    LEAD = 4
    for kp in range(LEAD):
        for st in (2 * kp, 2 * kp + 1):
            for it in dma(st) + hload(st):
                P += it if isinstance(it, list) else [it]
    P += read_bases(VL, RB, 3, T0)

    groups = [(kp, b) for kp in range(NP) for b in range(12)]

    def reads(gi):
        kp, b = groups[gi]
        out = []
        for j in range(2):
            st = 2 * kp + j
            off = (st % RING) * 12288 + (b >> 2) * 4096
            rg, off = divmod(off, 49152)
            for h in range(2):
                d = WF + (gi % NG) * 8 + j * 4 + h * 2
                out.append(I(f"ds_read_b64_tr_b16 {vr(d,2)}, v{RB+4*rg+(b&3)} offset:{off+2048*h}", tok=("r", gi, j, h)))
        return out

    def bar(kp):
        return I("s_barrier", needs=[("w", st, pn) for st in (2 * kp, 2 * kp + 1) for pn in range(3)])

    P.append(bar(0))
    for gi in range(AHEAD):
        P += reads(gi)
    slots, items = [], []
    for gi, (kp, b) in enumerate(groups):
        for r in range(2):
            for j in range(2):
                st = 2 * kp + j
                d = ACC + (b * 2 + r) * 4
                c = "0" if st == 0 else vr(d, 4)
                nd = []
                if r == 0 and j == 0:
                    nd += [("r", gi, 1, 1)]
                if b == 0:
                    nd += [("h", st, r)]
                pre = []
                if kp == NP - 1 and b == 0 and r == 0 and j == 0:
                    pre = L(f"s_cmp_lg_u32 s{sSp}, 4\ns_cbranch_scc1 k2_epi")
                slots.append((pre, mfma(d, vr(WF + (gi % NG) * 8 + j * 4, 4), hreg(st, r), c, nd)))
        g2 = gi + AHEAD
        if g2 < len(groups):
            base = 4 * gi
            if groups[g2][1] == 0:
                items.append((base, base, "rd", bar(groups[g2][0])))
            for j, rd in enumerate(reads(g2)):
                items.append((base + j, base + 5, "rd", rd))
    for kp in range(LEAD, NP):
        t0 = 48 * (kp - LEAD) - 4 * AHEAD + 1
        t0 = max(t0, 0)
        its = []
        for st in (2 * kp, 2 * kp + 1):
            its += dma(st) + hload(st)
        for j, it in enumerate(its):
            t = t0 + (44 * j) // len(its)
            items.append((t, t0 + 60, "vm", it))
    P += weave(slots, items)
    P.append(I("s_nop 7"))
    P.append(I("k2_epi:"))
    P.append(I("s_nop 7"))
    P.append(I(f"s_add_u32 s30, s{sP}, 4096"))
    P.append(I(f"v_add_u32 v{VH1}, 18432, v{VH0}"))
    for r in range(2):
        for c in range(6):
            y, z = ACC + (2 * c * 2 + r) * 4, ACC + ((2 * c + 1) * 2 + r) * 4
            P += L(f"""
            v_cvt_pk_bf16_f32 v{y}, v{y}, v{y+1}
            v_cvt_pk_bf16_f32 v{y+1}, v{y+2}, v{y+3}
            v_cvt_pk_bf16_f32 v{y+2}, v{z}, v{z+1}
            v_cvt_pk_bf16_f32 v{y+3}, v{z+2}, v{z+3}
            buffer_store_dwordx4 {vr(y,4)}, v{VH0+r}, s[12:15], s{sP if c < 4 else 30} offen offset:{1024*(c%4)}{SC1}
            """)
    P.append(I("k2_end:"))
    P.append(I("s_endpgm"))
    return P


VL, VW, VX, VS, RB, T0 = 1, 2, 4, 8, 12, 32
A0, WF, XV = 56, 200, 224
sW, sLds, sMt, sG, sCol, sOff, sX, sH = 16, 17, 18, 19, 20, 21, 32, 40


def xreg(s, r):
    fi = s * 4 + r
    return ar(fi * 4, 4) if fi < 64 else vr(XV + (fi - 64) * 4, 4)


def xload(s):
    return [I(f"buffer_load_dwordx4 {xreg(s,r)}, v{VX+r}, s[12:15], s{sX+(s>>2)} offen offset:{1024*(s&3)}",
              tok=("x", s, r)) for r in range(4)]


def k1_common(pitch):
    P = dma_piece(VL, VW, T0)
    P += L(f"""
    v_lshrrev_b32 v{T0+1}, 2, v{T0}
    v_and_b32 v{T0}, 3, v{T0}
    v_lshl_add_u32 v{T0}, v{T0+1}, 3, v{T0}
    s_and_b32 s22, s{sW}, 1
    s_lshl_b32 s22, s22, 4
    s_lshr_b32 s23, s{sW}, 1
    s_lshl_b32 s23, s23, 2
    s_add_u32 s22, s22, s23
    v_add_u32 v{T0}, s22, v{T0}
    v_mul_u32_u24 v{T0}, {pitch}, v{T0}
    v_add_u32 v{VW}, v{VW}, v{T0}
    v_lshlrev_b32 v{VX}, 4, v{VL}
    v_add_u32 v{VX+1}, 18432, v{VX}
    v_add_u32 v{VX+2}, {2*18432}, v{VX}
    v_add_u32 v{VX+3}, {3*18432}, v{VX}
    s_lshl_b32 s{sLds}, s{sW}, 10
    s_lshl_b32 s22, s{sMt}, 4
    s_lshl_b32 s23, s{sW}, 2
    s_add_u32 s22, s22, s23
    s_mul_i32 s{sX}, s22, 18432
    s_mul_i32 s{sH}, s22, {HRB}
    s_add_u32 s{sH}, s{sH}, {H_OFF}
    """)
    if XN_OFF:
        P.append(I(f"s_add_u32 s{sX}, s{sX}, {XN_OFF}"))
    for j in range(1, 5):
        P.append(I(f"s_add_u32 s{sX+j}, s{sX}, {4096*j}"))
    return P


class Stream:
    def __init__(self, ring):
        self.ring = ring
        self.groups = []

    def build(self, phases, pair0, bars, first):
        groups = []
        for pi, ph in enumerate(phases):
            for kp in range(9):
                for bi, blk in enumerate(ph["blocks"]):
                    groups.append((pair0 + pi * 9 + kp, kp, bi, blk, ph))
        npair_end = pair0 + 9 * len(phases)

        def reads(gi):
            gp, kp, bi, blk, ph = groups[gi]
            out = []
            for j in range(2):
                for h in range(2):
                    d = WF + (gi % 3) * 8 + j * 4 + h * 2
                    base, off, nd = blk[0](2 * gp + j, 2 * kp + j, h)
                    out.append(I(f"ds_read_b64_tr_b16 {vr(d,2)}, v{base} offset:{off}", tok=("r", gp, bi, j, h)))
            return out

        def bar(gp):
            nxt = min([b for b in bars if b > gp] + [npair_end])
            nxt = min(nxt, npair_end)
            nd = [("w", st) for st in range(2 * gp, 2 * nxt)] + list(bars[gp])
            return I("s_barrier", needs=nd)

        pre = []
        assert pair0 in bars
        pre.append(bar(pair0))
        pre += reads(0) + reads(1)
        slots, items, pairslot, barslot = [], [], {}, {pair0: -1}
        for gi, (gp, kp, bi, blk, ph) in enumerate(groups):
            if bi == 0:
                pairslot[gp] = len(slots)
            base = len(slots)
            for r in range(4):
                for j in range(2):
                    s = 2 * kp + j
                    d = blk[1](r)
                    c = "0" if s == 0 else vr(d, 4)
                    nd = []
                    if r == 0 and j == 0:
                        nd.append(("r", gp, bi, 1, 1))
                    if first and gp - pair0 < 9 and bi == 0:
                        nd.append(("x", s, r))
                    w = vr(WF + (gi % 3) * 8 + j * 4, 4)
                    a, b = (xreg(s, r), w) if ph["swap"] else (w, xreg(s, r))
                    slots.append(([], mfma(d, a, b, c, nd)))
            g2 = gi + 2
            if g2 < len(groups):
                if groups[g2][2] == 0 and groups[g2][0] in bars:
                    items.append((base, base, "rd", bar(groups[g2][0])))
                    barslot[groups[g2][0]] = base
                for j, rd in enumerate(reads(g2)):
                    items.append((base + 2 * j, base + 7, "rd", rd))
        pairslot[npair_end] = len(slots)
        return pre, slots, items, pairslot, barslot

    def main_rd(self, b4):
        def f(gstep, s, h):
            off = (gstep % self.ring) * 4096
            rg, off = divmod(off, 49152)
            return RB + 4 * rg + b4, off + 2048 * h, None
        return f


def wdma(gstep, ring, srdreg, soff):
    return [[I(f"s_add_u32 m0, s{sLds}, {(gstep % ring) * 4096}"), I(f"s_add_u32 s{sOff}, s{sCol}, {soff}")],
            I(f"buffer_load_dwordx4 v{VW}, s[{srdreg}:{srdreg+3}], s{sOff} offen lds", tok=("w", gstep))]


def flat(its):
    out = []
    for it in its:
        out += it if isinstance(it, list) else [it]
    return out


def place_dmas(items, dmas, tau, pairslot, barslot, ring, lo_pair, extra=None):
    bytime = {}
    for gp in sorted(dmas):
        bytime.setdefault(tau(gp), []).append(gp)
    for t, gps in sorted(bytime.items()):
        its = []
        for gp in gps:
            its += dmas[gp]
            if extra and gp in extra:
                its += extra[gp]
        s0, s1 = pairslot[t], pairslot[t + 1]
        for gp in gps:
            need = gp - ring // 2 + 2
            if need > lo_pair:
                ok = [b for b, sl in barslot.items() if b >= need and sl < s0]
                assert ok, ("ring WAR", gp, t)
        for j, it in enumerate(its):
            tgt = s0 + ((s1 - s0 - 2) * j) // len(its)
            items.append((tgt, s1 + 8, "vm", it))


def k1_ffn():
    X, Y = A0, A0 + 64
    RING = 36
    P = k1_common(9216)
    P += L(f"""
    s_mul_i32 s{sCol}, s{sG}, 384
    s_mul_i32 s22, s{sG}, 6144
    s_add_u32 s{sH}, s{sH}, s22
    s_add_u32 s{sH+1}, s{sH}, 4096
    v_lshlrev_b32 v{VS}, 4, v{VL}
    v_add_u32 v{VS+1}, {HRB}, v{VS}
    v_add_u32 v{VS+2}, {2*HRB}, v{VS}
    v_add_u32 v{VS+3}, {3*HRB}, v{VS}
    """)
    st = Stream(RING)

    def dma(gp):
        ph, kp = divmod(gp, 9)
        out = []
        for j in range(2):
            s = 2 * kp + j
            out += wdma(2 * gp + j, RING, 8 if ph % 2 == 0 else 24, s * 32 * 9216 + (ph // 2) * 128)
        return out

    NPRE = 6
    for gp in range(NPRE):
        P += flat(dma(gp)) + xload(2 * gp) + xload(2 * gp + 1)
    P += read_bases(VL, RB, 3, T0)
    phases = []
    for ph in range(6):
        base = X if ph % 2 == 0 else Y
        phases.append(dict(swap=False, blocks=[(st.main_rd(b), (lambda r, b=b, base=base: base + (b * 4 + r) * 4))
                                               for b in range(4)]))
    bars = {gp: [] for gp in range(54) if gp < 9 or gp % 3 == 0}
    pre, slots, items, pairslot, barslot = st.build(phases, 0, bars, True)
    LEAD = 12

    def tau(gp):
        if gp < 9:
            return gp - NPRE
        return max(3 + (gp - 9) // 2, gp - LEAD)

    place_dmas(items, {gp: dma(gp) for gp in range(NPRE, 54)}, tau, pairslot, barslot, RING, 0,
               extra={gp: xload(2 * gp) + xload(2 * gp + 1) for gp in range(NPRE, 9)})

    def silu(p):
        out = []
        for q in range(16):
            x = X + 4 * q
            t = T0 + 4 * (q % 2)
            out += [I(f"v_exp_f32 v{t+e}, -v{x+e}") for e in range(4)]
            out += [I(f"v_add_f32 v{t+e}, 1.0, v{t+e}") for e in range(4)]
            out += [I(f"v_rcp_f32 v{t+e}, v{t+e}") for e in range(4)]
            out += [I(f"v_mul_f32 v{x+e}, v{x+e}, v{t+e}") for e in range(4)]
        return out

    def muls(b):
        return [I(f"v_mul_f32 v{Y+16*b+e}, v{X+16*b+e}, v{Y+16*b+e}") for e in range(16)]

    def packstore(p, c, r):
        y, z = Y + (2 * c * 4 + r) * 4, Y + ((2 * c + 1) * 4 + r) * 4
        f = 2 * p + c
        return L(f"""
        v_cvt_pk_bf16_f32 v{y}, v{y}, v{y+1}
        v_cvt_pk_bf16_f32 v{y+1}, v{y+2}, v{y+3}
        v_cvt_pk_bf16_f32 v{y+2}, v{z}, v{z+1}
        v_cvt_pk_bf16_f32 v{y+3}, v{z+2}, v{z+3}
        buffer_store_dwordx4 {vr(y,4)}, v{VS+r}, s[12:15], s{sH+(f>>2)} offen offset:{1024*(f&3)}{SC1}
        """)

    tail = []
    for p in range(3):
        u0 = pairslot[(2 * p + 1) * 9]
        u1 = pairslot[(2 * p + 2) * 9]
        sl = silu(p)
        span = (u1 - 40) - (u0 + 4)
        for j, it in enumerate(sl):
            items.append((u0 + 4 + span * j // len(sl), u1 - 28, "va", it))
        for b in range(4):
            t0 = u1 - 32 + 8 * (b + 1) + 3
            for j, it in enumerate(muls(b)):
                if p < 2:
                    items.append((t0 + j // 2, u1 + 8 * b - 2, "va", it))
                elif b < 2:
                    items.append((min(t0 + j // 2, u1 - 1), u1 - 1, "va", it))
                else:
                    tail.append(it)
        ps = []
        for c in range(2):
            for r in range(4):
                ps += packstore(p, c, r)
        if p < 2:
            for j, it in enumerate(ps):
                items.append((u1 + 40 + 4 * j, u1 + 270, "va", it))
        else:
            tail = ps[:20] + tail + ps[20:]
    P += pre
    P += weave(slots, items)
    P += tail
    return P


KVT = [(0, 0), (1, 0), (0, 1), (1, 1), (2, 1), (1, 2), (2, 2), (3, 2), (2, 3), (3, 3), (4, 3), (3, 4), (4, 4),
       (0, 4), (1, 4), (2, 4)]
AFR = [(0, 0), (1, 0), (1, 1), (2, 0), (2, 1), (3, 1), (3, 2), (4, 1), (4, 2)]


def k1_att():
    KA, VA = A0, A0 + 80
    RING = 20
    QL, KL = 81920, 94208
    SCR = KL
    VKL, VQL, RKL, RQL, VFL, LB = 24, 25, 26, 27, 28, 40
    sK = 38
    P = k1_common(3456)
    P += L(f"""
    s_mul_i32 s{sCol}, s{sG}, 144
    v_lshrrev_b32 v{T0}, 1, v{VL}
    v_and_b32 v{T0+1}, 31, v{VL}
    """)

    def rowof(src, dst, t):
        return L(f"""
        v_bfe_u32 v{t}, v{src}, 2, 2
        v_and_b32 v{dst}, 3, v{src}
        v_lshl_add_u32 v{dst}, v{t}, 3, v{dst}
        v_lshrrev_b32 v{t}, 4, v{src}
        v_lshl_add_u32 v{dst}, v{t}, 2, v{dst}
        """)

    P += rowof(T0, VKL, T0 + 2)
    P += rowof(T0 + 1, VQL, T0 + 2)
    P += L(f"""
    v_mul_u32_u24 v{VKL}, 3456, v{VKL}
    v_and_b32 v{T0}, 1, v{VL}
    v_mul_u32_u24 v{T0}, 1152, v{T0}
    v_add_u32 v{VKL}, v{VKL}, v{T0}
    v_add_u32 v{VKL}, {1152+128}, v{VKL}
    v_lshrrev_b32 v{T0}, 5, v{VL}
    v_lshl_add_u32 v{VQL}, v{T0}, 5, v{VQL}
    v_mul_u32_u24 v{VQL}, 3456, v{VQL}
    v_add_u32 v{VQL}, 128, v{VQL}
    v_lshlrev_b32 v{RKL}, 3, v{VL}
    v_add_u32 v{RKL}, {KL}, v{RKL}
    v_lshrrev_b32 v{RQL}, 2, v{VL}
    v_lshlrev_b32 v{RQL}, 4, v{RQL}
    v_and_b32 v{T0}, 1, v{VL}
    v_lshl_add_u32 v{RQL}, v{T0}, 3, v{RQL}
    v_add_u32 v{RQL}, {QL}, v{RQL}
    """)
    st = Stream(RING)
    MOFF = [1152, 2304, 0]

    def dma(gp):
        ph, kp = divmod(gp, 9)
        out = []
        for j in range(2):
            s = 2 * kp + j
            out += wdma(2 * gp + j, RING, 8, s * 32 * 3456 + MOFF[ph])
        return out

    def kl_dma(i):
        return [L(f"""
                s_add_u32 s22, s{sW}, {4*i}
                s_lshl_b32 s23, s22, 10
                s_add_u32 m0, s23, {KL}
                s_min_u32 s22, s22, 17
                s_mul_i32 s22, s22, {32*3456}
                s_add_u32 s22, s22, s{sCol}
                """),
                I(f"buffer_load_dwordx4 v{VKL}, s[8:11], s22 offen lds", tok=("kl", i))]

    def ql_dma(i):
        return [L(f"""
                s_add_u32 s22, s{sW}, {4*i}
                s_lshl_b32 s23, s22, 10
                s_add_u32 m0, s23, {QL}
                s_min_u32 s22, s22, 8
                s_mul_i32 s22, s22, {64*3456}
                s_add_u32 s22, s22, s{sCol}
                """),
                I(f"buffer_load_dwordx4 v{VQL}, s[8:11], s22 offen lds", tok=("ql", i))]

    NPRE = 5
    for gp in range(NPRE):
        P += flat(dma(gp))
        if gp % 2 == 0:
            P += flat(kl_dma(gp // 2))
        P += xload(2 * gp) + xload(2 * gp + 1)
    P += read_bases(VL, RB, 2, T0)

    def tile(base, T, r):
        return base + (T * 4 + r) * 4

    def klrd(gstep, s, h):
        return RKL, s * 1024 + h * 512, None

    def qlrd(gstep, s, h):
        return RQL, s * 512 + h * 256, None

    phK = dict(swap=True, blocks=[(st.main_rd(b), (lambda r, b=b: tile(KA, b, r))) for b in range(4)]
               + [(klrd, lambda r: tile(KA, 4, r))])
    phV = dict(swap=True, blocks=[(st.main_rd(b), (lambda r, b=b: tile(VA, b, r))) for b in range(4)])
    phQ = dict(swap=False, blocks=[(st.main_rd(b), (lambda r, b=b: tile(KA, b, r))) for b in range(4)]
               + [(qlrd, lambda r: tile(KA, 4, r))])
    bars = {gp: [] for gp in range(18)}
    for gp in range(0, 9, 2):
        bars[gp] = [("kl", gp // 2)]
    pre, slots, items, pairslot, barslot = st.build([phK, phV], 0, bars, True)
    LEAD = 8

    def tau(gp):
        if gp < 9:
            return gp - NPRE
        return max(4 + (gp - 9) // 2, gp - LEAD)

    ex = {gp: xload(2 * gp) + xload(2 * gp + 1) for gp in range(NPRE, 9)}
    ex[6] = kl_dma(3) + ex[6]
    ex[8] = kl_dma(4) + ex[8]
    for i in range(3):
        ex[12 + i] = ql_dma(i)
    place_dmas(items, {gp: dma(gp) for gp in range(NPRE, 26)}, tau, pairslot, barslot, RING, 0, extra=ex)

    EPS = f32(1e-6)

    def phi(regs):
        out = []
        for q in range(0, len(regs), 4):
            xs = regs[q:q + 4]
            t = T0 + 4 * ((q // 4) % 2)
            out += [I(f"v_exp_f32 v{t+e}, v{x} clamp") for e, x in enumerate(xs)]
            out += [I(f"v_fmaak_f32 v{x}, v{VFL+1}, v{x}, {EPS}") for x in xs]
            out += [I(f"v_max_f32 v{x}, {EPS}, v{x}") for x in xs]
            out += [I(f"v_add_f32 v{x}, v{x}, v{t+e}") for e, x in enumerate(xs)]
        return out

    def pack(dst, y, z):
        out = [I(f"v_cvt_pk_bf16_f32 v{dst}, v{y}, v{y+1}"), I(f"v_cvt_pk_bf16_f32 v{dst+1}, v{y+2}, v{y+3}")]
        if z is None:
            out += [I(f"v_mov_b32 v{dst+2}, 0"), I(f"v_mov_b32 v{dst+3}, 0")]
        else:
            out += [I(f"v_cvt_pk_bf16_f32 v{dst+2}, v{z}, v{z+1}"), I(f"v_cvt_pk_bf16_f32 v{dst+3}, v{z+2}, v{z+3}")]
        return out

    fl = L(f"""
    v_mov_b32 v{VFL+1}, {f32(LN2)}
    v_mov_b32 v{VFL+2}, 0x3f803f80
    v_and_b32 v{T0}, 8, v{VL}
    v_cmp_eq_u32 s[26:27], 0, v{T0}
    """)
    for c in range(2):
        fl += pack(LB + 4 * c, tile(KA, 4, 2 * c), tile(KA, 4, 2 * c + 1))
    fl += [I(f"v_cndmask_b32 v{LB+e}, v{LB+e}, v{VFL+2}, s[26:27]") for e in range(8)]
    for T in range(5):
        for c in range(2):
            y = tile(KA, T, 2 * c)
            fl += phi(list(range(y, y + 8)))
            fl += pack(y, y, y + 4)
    v0s, v1s = pairslot[9], pairslot[18]
    for j, it in enumerate(fl):
        items.append((v0s + 4 + (v1s - v0s - 8) * j // len(fl), v1s - 1, "va", it))
    P += pre
    P += weave(slots, items)

    for T in range(4):
        for c in range(2):
            y = tile(VA, T, 2 * c)
            P += pack(y, y, y + 4)
    free = [tile(KA, T, r) for T in range(5) for r in (1, 3)] + [tile(VA, T, r) for T in range(4) for r in (1, 3)]
    kvacc = free[:16]
    for c in range(2):
        for ti, (dT, eT) in enumerate(KVT):
            a = vr(tile(KA, dT, 2 * c), 4)
            b = vr(tile(VA, eT, 2 * c), 4) if eT < 4 else vr(LB + 4 * c, 4)
            P.append(mfma(kvacc[ti], a, b, "0" if c == 0 else vr(kvacc[ti], 4)))
    P += L(f"""
    s_lshl_b32 s22, s{sW}, 14
    s_add_u32 s22, s22, {SCR}
    v_lshl_add_u32 v{T0}, v{VL}, 4, s22
    s_lshl_b32 s22, s{sW}, 12
    s_add_u32 s22, s22, {SCR}
    v_lshl_add_u32 v{T0+1}, v{VL}, 4, s22
    s_lshl_b32 s23, s{sG}, 17
    s_lshl_b32 s22, s{sW}, 12
    s_add_u32 s{sK}, s23, s22
    s_add_u32 s{sK}, s{sK}, {KVP_OFF}
    s_lshl_b32 s22, s{sMt}, 14
    s_add_u32 s{sK+1}, s{sK}, s22
    v_cmp_eq_u32 vcc, 0, v{VL}
    v_mov_b32 v{T0+2}, 0x40000000
    s_lshl_b32 s22, s{sG}, 5
    v_mov_b32 v{T0+3}, s22
    v_cndmask_b32 v{VFL}, v{T0+2}, v{T0+3}, vcc
    v_mov_b32 v{VFL+3}, 1
    """)
    for ti in range(16):
        P.append(I(f"ds_write_b128 v{T0}, {vr(kvacc[ti],4)} offset:{1024*ti}"))
    P.append(Sync(vm=False))
    P.append(I("s_barrier"))
    for j in range(4):
        for w2 in range(4):
            P.append(I(f"ds_read_b128 {vr(VA+(j*4+w2)*4,4)}, v{T0+1} offset:{16384*w2+1024*j}", tok=("kr", j, w2)))
    for j in range(4):
        b = VA + j * 16
        for e in range(4):
            P.append(I(f"v_add_f32 v{b+e}, v{b+e}, v{b+4+e}", needs=[("kr", j, 3)]))
            P.append(I(f"v_add_f32 v{b+8+e}, v{b+8+e}, v{b+12+e}"))
        for e in range(4):
            P.append(I(f"v_add_f32 v{b+e}, v{b+e}, v{b+8+e}"))
        P.append(I(f"buffer_store_dwordx4 {vr(b,4)}, v{VX}, s[12:15], s{sK+1} offen offset:{1024*j} sc1", tok=("ks", j)))

    bars = {gp: [] for gp in range(18, 27)}
    bars[18] = [("ql", i) for i in range(3)]
    pre, slots, items, pairslot, barslot = st.build([phQ], 18, bars, False)
    place_dmas(items, {26: dma(26)}, lambda gp: 18, pairslot, barslot, RING, 18)
    items.append((60, 60, "fl", I(f"buffer_atomic_add v{VFL+3}, v{VFL}, s[28:31], 0 offen", needs=[("ks", 3)])))
    fl = []
    fl += L(f"""
    s_mul_i32 s22, s{sG}, 18
    v_lshrrev_b32 v{T0}, 4, v{VL}
    v_and_b32 v{T0+1}, 15, v{VL}
    v_add_u32 v{T0+2}, s22, v{T0}
    """)
    VSO = 44
    VLO = 49
    for eT in range(5):
        add = 4 * eT if eT < 4 else 14
        fl += L(f"""
        v_add_u32 v{T0+3}, {add}, v{T0+2}
        v_lshrrev_b32 v{T0+4}, 3, v{T0+3}
        v_lshlrev_b32 v{VSO+eT}, 10, v{T0+4}
        v_and_b32 v{T0+4}, 3, v{T0+3}
        v_lshl_add_u32 v{VSO+eT}, v{T0+4}, 8, v{VSO+eT}
        v_bfe_u32 v{T0+4}, v{T0+3}, 2, 1
        v_lshl_add_u32 v{VSO+eT}, v{T0+4}, 3, v{VSO+eT}
        v_lshl_add_u32 v{VSO+eT}, v{T0+1}, 4, v{VSO+eT}
        v_add_u32 v{T0+3}, {16*eT if eT < 4 else 56}, v{T0+1}
        v_mul_u32_u24 v{T0+3}, 3641, v{T0+3}
        v_lshrrev_b32 v{T0+3}, 16, v{T0+3}
        v_mul_u32_u24 v{T0+3}, 18, v{T0+3}
        v_lshlrev_b32 v{T0+4}, 2, v{T0}
        v_sub_u32 v{VLO+eT}, v{T0+3}, v{T0+4}
        """)
    fl += L(f"""
    v_cmp_gt_u32 vcc, 32, v{VL}
    v_mov_b32 v{T0+3}, 0x40000000
    v_cndmask_b32 v{VSO+4}, v{VSO+4}, v{T0+3}, vcc
    s_add_u32 s{sH}, s{sH}, {144*1024}
    s_add_u32 s{sH+1}, s{sH}, {HRB}
    s_add_u32 s{sH+2}, s{sH}, {2*HRB}
    s_add_u32 s{sH+3}, s{sH}, {3*HRB}
    """)
    for j, it in enumerate(fl):
        items.append((8 + 2 * j, 340, "va", it))
    P += pre
    P += weave(slots, items)

    P += L(f"""
    s_lshl_b32 s22, s{sG}, 5
    v_mov_b32 v{T0}, s22
    s_mov_b32 s23, 0
    att_poll:
    buffer_load_dword v{T0+1}, v{T0}, s[28:31], 0 offen sc1
    """)
    P.append(Sync())
    P += L(f"""
    v_readfirstlane_b32 s22, v{T0+1}
    s_add_u32 s23, s23, 1
    s_cmp_ge_u32 s22, 32
    s_cbranch_scc1 att_go
    s_sleep 4
    s_cmp_lt_u32 s23, 0x40000
    s_cbranch_scc1 att_poll
    att_go:
    s_barrier
    """)
    PL = [136 + 4 * i for i in range(30)] + [LB - 4 + 4, 24]
    for mt in range(8):
        if mt:
            P.append(I(f"s_add_u32 s{sK}, s{sK}, 16384"))
        for j in range(4):
            P.append(I(f"buffer_load_dwordx4 {vr(PL[mt*4+j],4)}, v{VX}, s[12:15], s{sK} offen offset:{1024*j} sc1",
                       tok=("kp", mt, j)))
    for r in range(4):
        for c in range(3):
            y = tile(KA, 2 * c, r)
            z = tile(KA, 2 * c + 1, r) if c < 2 else None
            P += phi(list(range(y, y + 4)) + (list(range(z, z + 4)) if z else []))
            P += pack(y, y, z)
    for mt in range(1, 8):
        for j in range(4):
            for e in range(4):
                P.append(I(f"v_add_f32 v{PL[j]+e}, v{PL[j]+e}, v{PL[mt*4+j]+e}",
                           needs=[("kp", mt, j), ("kp", 0, j)] if e == 0 else []))
    P += L(f"""
    s_lshl_b32 s22, s{sW}, 12
    s_add_u32 s22, s22, {SCR}
    v_lshl_add_u32 v{T0}, v{VL}, 4, s22
    v_lshlrev_b32 v{T0+1}, 4, v{VL}
    v_add_u32 v{T0+1}, {SCR}, v{T0+1}
    v_and_b32 v{T0+2}, 48, v{VL}
    v_lshlrev_b32 v{T0+2}, 4, v{T0+2}
    v_add_u32 v{T0+2}, {SCR}, v{T0+2}
    """)
    for j in range(4):
        P.append(I(f"ds_write_b128 v{T0}, {vr(PL[j],4)} offset:{1024*j}"))
    P.append(Sync(vm=False))
    P.append(I("s_barrier"))
    RAW, KVF, ZF, ZPK = 184, 136, 184, 172
    for ti in range(13):
        P.append(I(f"ds_read_b128 {vr(RAW+4*ti,4)}, v{T0+1} offset:{1024*ti}", tok=("t", ti)))
    for dT in range(5):
        ti = KVT.index((dT, 4))
        P.append(I(f"ds_read_b128 {vr(RAW+52+4*dT,4)}, v{T0+2} offset:{1024*ti}", tok=("z", dT)))
    present = {}
    for ti, (dT, eT) in enumerate(KVT[:13]):
        fi = AFR.index((eT, dT >> 1))
        pos = 4 * fi + 2 * (dT & 1)
        present[pos] = (dT, eT)
        P.append(I(f"v_cvt_pk_bf16_f32 v{KVF+pos}, v{RAW+4*ti}, v{RAW+4*ti+1}", needs=[("t", ti)]))
        P.append(I(f"v_cvt_pk_bf16_f32 v{KVF+pos+1}, v{RAW+4*ti+2}, v{RAW+4*ti+3}"))
    for dT in range(5):
        b = RAW + 52 + 4 * dT
        P.append(I(f"v_cvt_pk_bf16_f32 v{ZPK+2*dT}, v{b}, v{b+1}", needs=[("z", dT)]))
        P.append(I(f"v_cvt_pk_bf16_f32 v{ZPK+2*dT+1}, v{b+2}, v{b+3}"))
    k = 0
    for pos in range(0, 36, 2):
        if pos not in present:
            for e in range(2):
                P.append(I(f"v_mov_b32 v{KVF+pos+e}, 0"))
                P.append(I(f"v_mov_b32 v{ZF+pos+e}, 0"))
            continue
        dT, eT = present[pos]
        m0, m1 = 44 + 4 * (k % 2), 46 + 4 * (k % 2)
        k += 1
        P += L(f"""
        v_sub_u32 v{T0+4}, {16*dT}, v{VLO+eT}
        v_sub_u32 v{T0+5}, {16*dT+2}, v{VLO+eT}
        v_cmp_gt_u32 s[{m0}:{m0+1}], 18, v{T0+4}
        v_cmp_gt_u32 s[{m1}:{m1+1}], 18, v{T0+5}
        """)
        for e, m in enumerate((m0, m1)):
            P.append(I(f"v_cndmask_b32 v{KVF+pos+e}, 0, v{KVF+pos+e}, s[{m}:{m+1}]"))
            P.append(I(f"v_cndmask_b32 v{ZF+pos+e}, 0, v{ZPK+2*dT+e}, s[{m}:{m+1}]"))
    fr = [220 + 4 * i for i in range(9)] + [172, 176, 180] + [tile(KA, T, r) for T in (1, 3) for r in range(4)]
    sets = [fr[:10], fr[10:20]]
    P.append(I(f"v_mov_b32 v{VFL+2}, {f32(1e-6*LN2)}"))

    def omf(r):
        S = sets[r % 2]
        out = []
        seen = set()
        for fi, (eT, c) in enumerate(AFR):
            for z, F in enumerate((KVF, ZF)):
                d = S[2 * eT + z]
                out.append(mfma(d, vr(F + 4 * fi, 4), vr(tile(KA, 2 * c, r), 4), vr(d, 4) if (eT, z) in seen else "0"))
                seen.add((eT, z))
        return out

    def onorm(r):
        S = sets[r % 2]
        out = []
        for eT in range(5):
            n, d = S[2 * eT], S[2 * eT + 1]
            out += [I(f"v_fma_f32 v{d+e}, v{d+e}, v{VFL+1}, v{VFL+2}") for e in range(4)]
            out += [I(f"v_rcp_f32 v{d+e}, v{d+e}") for e in range(4)]
            out += [I(f"v_mul_f32 v{n+e}, v{n+e}, v{d+e}") for e in range(4)]
            out += [I(f"v_cvt_pk_bf16_f32 v{n}, v{n}, v{n+1}"), I(f"v_cvt_pk_bf16_f32 v{n+1}, v{n+2}, v{n+3}")]
            out.append(I(f"buffer_store_dwordx2 {vr(n,2)}, v{VSO+eT}, s[12:15], s{sH+r} offen{SC1}"))
        return out

    P += omf(0)
    for r in range(4):
        if r < 3:
            P += omf(r + 1)
        P += onorm(r)
    return P


def k1():
    P = L(f"""
    s_cmp_ge_u32 s2, 256
    s_cbranch_scc1 k1_end
    s_load_dwordx2 s[4:5], s[0:1], 8
    s_load_dwordx4 s[44:47], s[0:1], 32
    s_load_dwordx4 s[48:51], s[0:1], 64
    s_and_b32 s22, s2, 7
    s_lshr_b32 s23, s2, 3
    s_and_b32 s{sMt}, s22, 1
    s_lshl_b32 s{sMt}, s{sMt}, 2
    s_and_b32 s24, s23, 3
    s_add_u32 s{sMt}, s{sMt}, s24
    s_lshr_b32 s22, s22, 1
    s_lshr_b32 s23, s23, 2
    """)
    P += lane_setup(VL, sW)
    P.append(I("s_waitcnt lgkmcnt(0)"))
    P += srd(12, 50, WS_BYTES)
    P += L("""
    s_cmp_lt_u32 s2, 64
    s_cbranch_scc1 k1_att
    """)
    F = L(f"""
    s_mul_i32 s{sG}, s22, 6
    s_add_u32 s{sG}, s{sG}, s23
    s_sub_u32 s{sG}, s{sG}, 2
    """)
    F += srd(8, 44, 576 * 9216)
    F += srd(24, 46, 576 * 9216)
    F += k1_ffn()
    F.append(I("k1_end:"))
    F.append(I("s_endpgm"))
    A = [I("k1_att:")]
    A += L(f"""
    s_lshl_b32 s{sG}, s22, 1
    s_add_u32 s{sG}, s{sG}, s23
    """)
    A += srd(8, 4, 576 * 3456)
    A += srd(28, 48, 256)
    A += k1_att()
    A.append(I("s_endpgm"))
    return P, F, A


HEADER = open("cdna_kernels/%s.s.ref" % NAME).read().split("; Override launch")[0]


def kd(name, vgpr, accum, sgpr=64):
    return f""".p2align 6
.amdhsa_kernel {name}
  .amdhsa_next_free_vgpr {vgpr}
  .amdhsa_next_free_sgpr {sgpr}
  .amdhsa_accum_offset {accum}
  .amdhsa_group_segment_fixed_size 0
  .amdhsa_kernarg_size 80
  .amdhsa_user_sgpr_count 2
  .amdhsa_user_sgpr_kernarg_segment_ptr 1
  .amdhsa_system_sgpr_workgroup_id_x 1
  .amdhsa_float_denorm_mode_32 3
.end_amdhsa_kernel
"""


def main():
    out = HEADER
    out += "; @launch kernel=ln_kernel grid=(256,1,1) block=(256,1,1) lds=10368\n"
    out += "; @launch kernel=up_kernel grid=(256,1,1) block=(256,1,1) lds=163840\n"
    out += "; @launch kernel=down_kernel grid=(240,1,1) block=(256,1,1) lds=147456\n"
    out += "; @launch kernel=red_kernel grid=(256,1,1) block=(576,1,1) lds=18688\n"
    out += '.amdgcn_target "amdgcn-amd-amdhsa--gfx950"\n.text\n'

    def kern(name, *progs):
        s = f".globl {name}\n.p2align 8\n.type {name},@function\n{name}:\n"
        for p in progs:
            t, pads, n = finish(p, name)
            print(name, "instrs", n, "hazard pads", pads, file=sys.stderr)
            s += t
        return s

    out += kern("ln_kernel", k0())
    p, f, a = k1()
    out += kern("up_kernel", p + f, a)
    out += kern("down_kernel", k2())
    out += kern("red_kernel", k3())
    out += '.section .rodata,"a"\n'
    out += kd("ln_kernel", 64, 64)
    out += kd("up_kernel", 512, 256)
    out += kd("down_kernel", 512, 256)
    out += kd("red_kernel", 56, 56)
    dst = OPT.get("out_path") or "cdna_kernels/%s.s" % NAME
    for a in sys.argv[1:]:
        if a.endswith(".s"):
            dst = a
    open(dst, "w").write(out)
    print("wrote", dst, len(out), "bytes", file=sys.stderr)


if __name__ == "__main__":
    main()
```

```python
import re

TRANS = ("v_exp_f32", "v_rcp_f32", "v_rsq_f32", "v_sqrt_f32", "v_log_f32")


def vr(i, n=1, p="v"):
    return f"{p}{i}" if n == 1 else f"{p}[{i}:{i + n - 1}]"


def ar(i, n=1):
    return vr(i, n, "a")


def sr(i, n=1):
    return vr(i, n, "s")


_REG = re.compile(r"^(-|\|)?([vas])(\d+)\|?$|^(-)?([vas])\[(\d+):(\d+)\]$")


def regs_of(op):
    op = op.strip()
    if op in ("vcc", "exec", "m0", "scc"):
        return {op}
    m = _REG.match(op)
    if not m:
        return set()
    if m.group(2):
        return {m.group(2) + m.group(3)}
    return {m.group(5) + str(i) for i in range(int(m.group(6)), int(m.group(7)) + 1)}


class I:
    __slots__ = ("text", "cls", "cost", "tok", "needs", "R", "W", "AB", "C", "op", "dpp", "count", "lds")

    def __init__(self, text, tok=None, needs=(), cost=None, count=True, lds=None):
        self.lds = lds
        self.count = count
        self.text = text
        self.tok = tok
        self.needs = list(needs)
        t = text.split(";")[0].strip()
        self.R, self.W, self.AB, self.C = set(), set(), set(), set()
        self.dpp = False
        if t.endswith(":"):
            self.cls, self.op, self.cost = "label", "", 0
            return
        parts = t.split(None, 1)
        op = parts[0]
        self.op = op
        rest = parts[1] if len(parts) > 1 else ""
        ops, depth, cur = [], 0, ""
        for ch in rest:
            if ch == "[":
                depth += 1
            if ch == "]":
                depth -= 1
            if ch == "," and depth == 0:
                ops.append(cur.strip())
                cur = ""
            else:
                cur += ch
        if cur.strip():
            ops.append(cur.strip())
        mods = ""
        if ops:
            last = ops[-1].split(None, 1)
            ops[-1] = last[0]
            mods = last[1] if len(last) > 1 else ""
        rs = [regs_of(o) for o in ops]
        allr = set().union(*rs) if rs else set()
        if op.startswith("v_mfma"):
            self.cls, c = "mfma", 8
            self.W = rs[0]
            self.AB = rs[1] | rs[2]
            self.C = rs[3]
            self.R = self.AB | self.C
        elif op.startswith("ds_read"):
            self.cls, c = "ds", 4
            self.W, self.R = rs[0], rs[1]
        elif op.startswith("ds_"):
            self.cls, c = "ds", 8
            self.R = allr
        elif op.startswith("buffer_load") or op.startswith("global_load"):
            self.cls, c = "vmem", 24
            if " lds" in " " + mods:
                self.R = allr | {"m0"}
            else:
                self.W = rs[0]
                self.R = set().union(*rs[1:])
        elif op.startswith("buffer_") or op.startswith("global_"):
            self.cls, c = "vmem", 24
            self.R = allr
        elif op.startswith("s_waitcnt") or op in ("s_split",):
            self.cls, c = "wait", 4
        elif op == "s_nop":
            self.cls, c = "nop", 4 * (int(ops[0]) + 1)
        elif op == "s_barrier":
            self.cls, c = "bar", 8
        elif op.startswith("s_cbranch") or op in ("s_branch", "s_endpgm", "s_sleep", "s_setprio"):
            self.cls, c = "branch", 4
        elif op.startswith("s_load") or op.startswith("s_mem"):
            self.cls, c = "smem", 4
            self.W = rs[0]
            self.R = set().union(*rs[1:]) if len(rs) > 1 else set()
        elif op.startswith("s_cmp") or op.startswith("s_bitcmp"):
            self.cls, c = "salu", 4
            self.R = allr
        elif op.startswith("s_"):
            self.cls, c = "salu", 4
            self.W = rs[0]
            self.R = set().union(*rs[1:]) if len(rs) > 1 else set()
        elif op.startswith("v_"):
            base = op.replace("_e32", "").replace("_e64", "")
            self.cls, c = ("trans", 8) if base in TRANS else ("valu", 4)
            self.W = set(rs[0])
            self.R = set().union(*rs[1:]) if len(rs) > 1 else set()
            if base.startswith("v_fmac") or base.startswith("v_dot2c"):
                self.R |= rs[0]
            if base.startswith("v_permlane") or base.startswith("v_swap"):
                self.R, self.W = allr, allr
            if base.startswith("v_add_co") or base.startswith("v_addc_co") or base.startswith("v_sub_co"):
                self.W |= rs[1]
            if "quad_perm" in mods or "row_" in mods:
                self.dpp = True
        else:
            raise ValueError("unknown instr " + text)
        self.cost = c if cost is None else cost


def is_valu(i):
    return i.cls in ("valu", "trans")


class Sync:
    def __init__(self, vm=True, lg=True):
        self.vm, self.lg = vm, lg


def insert_waits(prog):
    out = []
    pos = {}
    n = {"vm": 0, "lg": 0}
    done = {"vm": 0, "lg": 0}
    cap = {"vm": 63, "lg": 15}
    bar = {"vm": 0, "lg": 0}
    fills, rds = [], []
    for ins in prog:
        if isinstance(ins, Sync):
            parts = []
            if ins.vm:
                parts.append("vmcnt(0)")
                done["vm"] = n["vm"]
            if ins.lg:
                parts.append("lgkmcnt(0)")
                done["lg"] = n["lg"]
            out.append(I("s_waitcnt " + " ".join(parts)))
            continue
        want = {}
        for t in ins.needs:
            k, idx = pos[t]
            if idx >= done[k]:
                want[k] = max(want.get(k, -1), idx)
        if want:
            parts = []
            for k, idx in want.items():
                cnt = min(n[k] - 1 - idx, cap[k])
                parts.append(("vmcnt(%d)" if k == "vm" else "lgkmcnt(%d)") % cnt)
                done[k] = n[k] - cnt
            out.append(I("s_waitcnt " + " ".join(parts)))
        if ins.op == "need":
            continue
        out.append(ins)
        k = {"vmem": "vm", "ds": "lg"}.get(ins.cls)
        if ins.cls == "bar":
            bar = dict(done)
        if ins.lds:
            lo, hi, tag = ins.lds
            if ins.op.startswith("ds_read"):
                cover = lo
                live = []
                for f in reversed(fills):
                    if f[0] < hi and lo < f[1] and not any(g[0] <= f[0] and f[1] <= g[1] and g[2] != f[2] for g in live):
                        live.append(f)
                assert live, ("LDS read of a never filled range", ins.text, ins.lds)
                newest = live[0]
                assert newest[2] == tag, ("LDS tag mismatch", ins.text, ins.lds, newest)
                for f in live:
                    if f[2] == tag:
                        assert f[4] < bar[f[3]], ("LDS RAW: fill not covered before the last barrier", ins.text, ins.lds, f, bar)
                rds.append((lo, hi, tag, k, n[k]))
            else:
                for r in rds:
                    if r[0] < hi and lo < r[1]:
                        assert r[4] < bar["lg"], ("LDS WAR: read not complete before the last barrier", ins.text, ins.lds, r, bar)
                rds = [r for r in rds if not (lo <= r[0] and r[1] <= hi)]
                fills.append((lo, hi, tag, k, n[k]))
        assert ins.cls != "smem" or True
        if k and ins.count:
            if ins.tok is not None:
                assert ins.tok not in pos, ins.tok
                pos[ins.tok] = (k, n[k])
            n[k] += 1
    return out


def states(i):
    if i.cls == "label":
        return 0
    if i.cls == "nop":
        return i.cost // 4
    return 1


def pad_hazards(prog, name=""):
    out = []
    pads = 0
    for ins in prog:
        need = 0
        dist = 0
        for prev in reversed(out):
            if dist >= 20:
                break
            req = 0
            pw_v = {r for r in prev.W if r[0] in "va" and r not in ("vcc",)}
            if prev.cls == "mfma":
                big = "32x32" in prev.op
                lat = 12 if big else 8
                if ins.cls == "mfma":
                    if ins.AB & prev.W:
                        req = max(req, lat)
                    if ins.C & prev.W and ins.C != prev.W:
                        req = max(req, lat - 2)
                    if (ins.W & prev.W) and not (ins.C == prev.W and ins.W == prev.W):
                        req = max(req, lat)
                elif is_valu(ins):
                    if (ins.R | ins.W) & prev.W:
                        req = max(req, lat)
                    if ins.W & prev.C:
                        req = max(req, 7 if big else 3)
                elif ins.cls in ("vmem", "ds"):
                    if (ins.R | ins.W) & prev.W:
                        req = max(req, lat)
            elif is_valu(prev):
                if ins.cls == "mfma" and ins.R & pw_v:
                    req = max(req, 2)
                if prev.op.startswith("v_dot") and not ins.op.startswith("v_dot") and (ins.R | ins.W) & pw_v:
                    req = max(req, 3)
                if prev.cls == "trans" and ins.cls == "valu" and ins.R & pw_v:
                    req = max(req, 1)
                if is_valu(ins) and ins.dpp and ins.R & pw_v:
                    req = max(req, 2)
                if ins.op.startswith("v_permlane") and ins.R & pw_v:
                    req = max(req, 2)
                if ins.op.startswith("v_readfirstlane") or ins.op.startswith("v_readlane"):
                    if ins.R & pw_v:
                        req = max(req, 1)
                pw_s = {r for r in prev.W if r[0] == "s" or r == "vcc"}
                if pw_s:
                    if is_valu(ins) and ins.R & pw_s:
                        req = max(req, 2)
                    if ins.cls == "vmem" and ins.R & pw_s:
                        req = max(req, 5)
                    if ins.cls == "salu" and ins.R & pw_s:
                        req = max(req, 2)
            elif prev.cls == "vmem" and ("store" in prev.op) and ("x4" in prev.op or "x3" in prev.op):
                data = {r for r in prev.R if r[0] in "va"}
                if ins.W & data:
                    req = max(req, 2 if is_valu(ins) else 1)
            elif prev.cls == "salu" and "m0" in prev.W:
                if ins.cls == "vmem" and "m0" in ins.R:
                    req = max(req, 1)
            need = max(need, req - dist)
            dist += states(prev)
        if need > 0:
            out.append(I("s_nop %d" % (need - 1)))
            pads += 1
        out.append(ins)
    return out, pads


class Need:
    cls, op, cost, tok, text = "wait", "need", 4, None, ""
    R = W = AB = C = frozenset()
    dpp = False
    lds = None

    def __init__(self, needs):
        self.needs = list(needs)


def _rank(x):
    i = x[0] if isinstance(x, list) else x
    return {"valu": 2, "trans": 2, "ds": 1, "vmem": 1}.get(i.cls, 0)


def gap_time(seq):
    t, sawv = 4, False
    for x in seq:
        for i in (x if isinstance(x, list) else [x]):
            if i.cost == 0:
                continue
            if i.needs and i.op != "need":
                t += 4
            if i.cls in ("valu", "trans"):
                t = max(t, 8) + i.cost
                sawv = True
            elif i.cls == "ds":
                t += 12 if sawv else 8
            elif i.cls == "vmem":
                t += 16 if sawv else 12
            else:
                t += 4
    return t


def weave(slots, items, prio=None, report=None):
    streams = {}
    last = len(slots) - 1
    prio = prio or {}
    for it in items:
        streams.setdefault(it[2], []).append((min(it[0], last), min(it[1], last), it[2], it[3]))
    heads = {k: 0 for k in streams}
    for k, lst in streams.items():
        dl = 1 << 30
        for j in range(len(lst) - 1, -1, -1):
            dl = min(dl, lst[j][1])
            lst[j] = (lst[j][0], dl, lst[j][2], lst[j][3])
        for it in lst:
            assert it[0] <= it[1], ("target after deadline", k, it[0], it[1])
    out = []
    over = 0

    def order(ch):
        res = []
        for c in ch:
            pos = len(res)
            while pos > 0 and _rank(res[pos - 1][3]) > _rank(c[3]) and res[pos - 1][2] != c[2]:
                pos -= 1
            res.insert(pos, c)
        return res

    for idx, (pre, m) in enumerate(slots):
        out.extend(pre)
        if idx == 0 and m.needs:
            out.append(Need(m.needs))
        m.needs = []
        out.append(m)
        chosen = []
        tailpre = []
        if idx < last:
            if slots[idx + 1][1].needs:
                chosen.append((idx, idx, "__need", Need(slots[idx + 1][1].needs)))
            tailpre = list(slots[idx + 1][0])
        while True:
            cands = [streams[k][heads[k]] for k in streams if heads[k] < len(streams[k])]
            forced = [c for c in cands if c[1] <= idx]
            if forced:
                c = min(forced, key=lambda c: (c[1], c[0]))
            else:
                el = [c for c in cands if c[0] <= idx]
                el.sort(key=lambda c: (c[0] - prio.get(c[2], 0), c[1]))
                c = None
                for e in el:
                    if gap_time([x[3] for x in order(chosen + [e])] + tailpre) <= 16:
                        c = e
                        break
                    if gap_time([e[3]]) > 16 and not chosen and not tailpre and e is el[0]:
                        c = e
                        break
                if c is None:
                    break
            chosen.append(c)
            heads[c[2]] += 1
        ch = order(chosen)
        over += max(0, gap_time([x[3] for x in ch] + tailpre) - 16)
        for c in ch:
            if isinstance(c[3], list):
                out.extend(c[3])
            else:
                out.append(c[3])
    for k in streams:
        assert heads[k] == len(streams[k]), ("items left over", k, heads[k], len(streams[k]))
    if report:
        import sys
        print("  weave %s: %d mfma, modelled overflow %d cycles" % (report, len(slots), over), file=sys.stderr)
    return out


def finish(prog, name=""):
    prog = insert_waits(prog)
    prog, pads = pad_hazards(prog, name)
    return "\n".join(i.text for i in prog) + "\n", pads, len(prog)
```

```python
import struct
import sys
from asmlib import I, Sync, vr, ar, sr, weave, finish

NAME = "parallel_sum__linear_attn_block__glu_gated_swiglu__prompt"
KNAME = NAME + "_kernel"


def f32(x):
    return "0x%08x" % struct.unpack("<I", struct.pack("<f", x))[0]


L2E = 1.4426950408889634
LN2 = 0.6931471805599453

WS_BYTES = 0x10000000
XN_OFF = 0
H_OFF = 0x400000
KVP_OFF = 0x2000000
P_OFF = 0x2400000
P_STRIDE = 128 * 18 * 1024
PG_OFF = 0x4000000
PGS = 48 * 65536
NF = 162
HRB = NF * 1024
FL_OFF = 0x3800000
BIG = 0x40000000

OPT = dict(st_sc1=True)
for a in sys.argv[1:]:
    if "=" in a:
        k, v = a.split("=")
        OPT[k] = int(v)

SC1 = " sc1" if OPT["st_sc1"] else ""
OSC = {0: "", 1: " sc1", 2: " nt"}[OPT.get("osc", 0)]


def srd(d, p, nbytes):
    return [I(f"s_mov_b32 s{d}, s{p}"), I(f"s_and_b32 s{d+1}, s{p+1}, 0xffff"),
            I(f"s_mov_b32 s{d+2}, {nbytes}"), I(f"s_mov_b32 s{d+3}, 0x20000")]


STAMP = OPT.get("stamp", 0)
STAMP_OFF = 0x3000000
NSTAMP = 10


SB = 80


def stamp(i, mode=0):
    if not STAMP or (OPT.get("smode", 0) != mode and 0 < i < 7):
        return []
    assert i < NSTAMP
    return [I(f"{'s_memrealtime' if STAMP == 1 else 's_memtime'} s[{SB+2*i}:{SB+1+2*i}]", cost=0)]


def stamp_init():
    return [I(f"s_mov_b32 s{r}, 0") for r in range(SB, SB + 2 * NSTAMP)] if STAMP else []


def stamp_dump(kid, swave, srdreg=12, last=None):
    if not STAMP:
        return []
    P = [Sync()]
    if last is not None:
        P += stamp(last) + [Sync()]
    P += L(f"""
    s_mul_i32 s100, s2, 16
    s_add_u32 s100, s100, s{swave}
    s_lshl_b32 s100, s100, 8
    s_add_u32 s100, s100, {STAMP_OFF + kid * 0x100000}
    v_mov_b32 v0, 0
    """)
    for i in range(NSTAMP):
        P += [I(f"v_mov_b32 v{2+e}, s{SB+2*i+e}") for e in range(2)]
        P.append(I(f"buffer_store_dwordx2 v[2:3], v0, s[{srdreg}:{srdreg+3}], s100 offen offset:{8*i}"))
        P.append(I("s_nop 1"))
    if OPT.get("dbgst"):
        global _nd
        _nd += 1
        P += L(f"""
        s_lshl_b32 s101, s2, 2
        s_add_u32 s101, s101, s{swave}
        s_cmp_lg_u32 s101, {4 * OPT["dbgst"]}
        s_cbranch_scc1 nodbg{_nd}
        """)
        for i in range(1, NSTAMP):
            P += L(f"""
            s_sub_u32 s101, s{SB+2*i}, s{sTag}
            v_mov_b32 v2, s101
            buffer_store_dword v2, v0, s[72:75], 0 offen offset:{4*i}
            """)
        P.append(I(f"nodbg{_nd}:"))
    return P


_nd = 0


def L(text):
    return [I(t.strip()) for t in text.strip().split("\n") if t.strip()]


LB0 = 64
LNB = 122880
FL_KV = FL_OFF + 128 * 128
FL_LN = FL_OFF + 0x10000
LNS = OPT.get('lns', 7)
FL_P = FL_OFF + 168 * 128
sTag, sLn = 76, 77


def ln_loads():
    B = LB0
    return [I(f"buffer_load_dwordx2 {vr(B+8+2*j,2)}, v{B+3}, s[64:67], 0 offen offset:{128*j}", tok=("lx", j)) for j in range(9)]


def ln_addr1():
    B = LB0
    return L(f"""
    s_lshr_b32 s{sLn}, s23, 2
    s_mul_i32 s{sLn}, s{sLn}, 3
    s_and_b32 s24, s23, 3
    s_add_u32 s{sLn}, s{sLn}, s24
    s_sub_u32 s{sLn}, s{sLn}, 7
    s_lshl_b32 s{sLn}, s{sLn}, 3
    s_add_u32 s{sLn}, s{sLn}, s22
    s_cmp_eq_u32 s24, 0
    s_cselect_b32 s{sLn}, 128, s{sLn}
    s_min_u32 s{sLn}, s{sLn}, 128
    s_mul_i32 s3, s{sLn}, 18432
    v_lshrrev_b32 v{B+1}, 4, v0
    v_and_b32 v{B+2}, 15, v0
    v_mul_u32_u24 v{B+3}, 1152, v{B+1}
    v_lshl_add_u32 v{B+3}, v{B+2}, 3, v{B+3}
    v_add_u32 v{B+3}, s3, v{B+3}
    """)


def ln_block(slow):
    B = LB0
    P = L(f"""
    v_lshrrev_b32 v{B+4}, 1, v{B+2}
    v_mul_u32_u24 v{B+4}, 272, v{B+4}
    v_lshl_add_u32 v{B+4}, v{B+1}, 4, v{B+4}
    v_and_b32 v{B+5}, 1, v{B+2}
    v_lshl_add_u32 v{B+4}, v{B+5}, 3, v{B+4}
    v_add_u32 v{B+4}, {LNB}, v{B+4}
    v_mul_u32_u24 v{B+7}, 272, v{B+1}
    v_lshl_add_u32 v{B+7}, v{B+2}, 4, v{B+7}
    v_add_u32 v{B+7}, {LNB}, v{B+7}
    v_lshlrev_b32 v{B+5}, 4, v0
    v_mov_b32 v{B+6}, {BIG}
    v_cmp_gt_u32 vcc, 128, v0
    v_cndmask_b32 v{B+6}, v{B+6}, v{B+5}, vcc
    s_lshl_b32 s{sHt}, s{sLn}, 2
    s_add_u32 s{sHt}, s{sHt}, s{sW}
    s_lshl_b32 s{sHt}, s{sHt}, {LNS}
    s_add_u32 s{sHt}, s{sHt}, {FL_LN}
    s_mul_i32 s{sLn}, s{sLn}, 18432
    s_add_u32 s{sLn}, s{sLn}, {XN_OFF}
    s_mov_b32 s78, 0x3f803f80
    """)
    S1, S2, F = B + 26, B + 28, B + 32
    for d in range(18):
        x = B + 8 + d
        nd = [("lx", d // 2)] if d % 2 == 0 else []
        P.append(I(f"v_dot2_f32_bf16 v{S1+(d&1)}, v{x}, s78, {'0' if d < 2 else 'v%d' % (S1+(d&1))}", needs=nd))
        P.append(I(f"v_dot2_f32_bf16 v{S2+(d&1)}, v{x}, v{x}, {'0' if d < 2 else 'v%d' % (S2+(d&1))}"))
    P += tag_load(VPD, VONE)
    un = []
    for d in range(18):
        un.append(I(f"v_lshlrev_b32 v{F+2*d}, 16, v{B+8+d}"))
        un.append(I(f"v_and_b32 v{F+2*d+1}, 0xffff0000, v{B+8+d}"))
    chain = L(f"""
    v_add_f32 v{S1}, v{S1}, v{S1+1}
    v_add_f32 v{S2}, v{S2}, v{S2+1}
    """)
    for dpp in ("quad_perm:[1,0,3,2]", "quad_perm:[2,3,0,1]", "row_half_mirror", "row_mirror"):
        chain += L(f"""
        v_add_f32 v{S1}, v{S1}, v{S1} {dpp} row_mask:0xf bank_mask:0xf
        v_add_f32 v{S2}, v{S2}, v{S2} {dpp} row_mask:0xf bank_mask:0xf
        """)
    chain += L(f"""
    v_mul_f32 v{S1}, {f32(1/576)}, v{S1}
    v_mul_f32 v{S2}, {f32(1/576)}, v{S2}
    v_fma_f32 v{S2}, -v{S1}, v{S1}, v{S2}
    v_max_f32 v{S2}, 0, v{S2}
    v_cvt_pk_bf16_f32 v{S2}, v{S1}, v{S2}
    v_lshlrev_b32 v{S1}, 16, v{S2}
    v_and_b32 v{S2}, 0xffff0000, v{S2}
    v_add_f32 v{S2}, {f32(1e-5)}, v{S2}
    v_cvt_pk_bf16_f32 v{S2}, v{S2}, v{S2}
    v_lshlrev_b32 v{S2}, 16, v{S2}
    v_sqrt_f32 v{S2}, v{S2}
    v_cvt_pk_bf16_f32 v{S2}, v{S2}, v{S2}
    v_lshlrev_b32 v{S2}, 16, v{S2}
    v_rcp_f32 v{S2}, v{S2}
    v_mul_f32 v{S2}, {f32(L2E)}, v{S2}
    v_mul_f32 v{S1}, v{S1}, v{S2}
    """)
    P += un[:4]
    un = un[4:]
    for c in chain:
        P.append(c)
        P += un[:1]
        un = un[1:]
    P += un
    for j in range(9):
        for d in (2 * j, 2 * j + 1):
            P += L(f"""
            v_fma_f32 v{F+2*d}, v{F+2*d}, v{S2}, -v{S1}
            v_fma_f32 v{F+2*d+1}, v{F+2*d+1}, v{S2}, -v{S1}
            v_cvt_pk_bf16_f32 v{B+8+d}, v{F+2*d}, v{F+2*d+1}
            """)
        P.append(I(f"ds_write_b64 v{B+4}, {vr(B+8+2*j,2)} offset:{8*272*j}"))
    P.append(Sync(vm=False))
    P.append(I("s_barrier"))
    for i in range(5):
        P.append(I(f"ds_read_b128 {vr(F+4*i,4)}, v{B+7} offset:{16*272*i}", tok=("lr", i)))
    for i in range(5):
        if i:
            P.append(I(f"s_add_u32 s{sLn}, s{sLn}, 4096"))
        P.append(I(f"buffer_store_dwordx4 {vr(F+4*i,4)}, v{B+5+(i==4)}, s[12:15], s{sLn} offen sc1", needs=[("lr", i)],
                   tok="lns" if i == 4 else None))
    P += stamp(1) + stamp(2, 1)
    P += tag_check("l", VPD, VONE, VONE, slow)
    P.append(I(f"buffer_store_dword v{VONE}, v{VFO}, s[12:15], s{sHt} offen sc1", needs=["lns"]))
    return P


def code_prefetch(lab):
    B = LB0
    P = L(f"""
    s_lshr_b32 s60, s2, 3
    s_lshl_b32 s60, s60, 2
    s_add_u32 s60, s60, s{sW}
    s_lshl_b32 s60, s60, 13
    s_cmp_lt_u32 s60, code_end-{KNAME}
    s_cselect_b32 s61, code_end-{KNAME}-4, 0
    s_getpc_b64 s[62:63]
    pc_{lab}:
    s_sub_u32 s62, s62, pc_{lab}-{KNAME}
    s_subb_u32 s63, s63, 0
    v_lshlrev_b32 v{B}, 7, v{VL}
    v_add_u32 v{B}, s60, v{B}
    v_min_u32 v{B}, s61, v{B}
    v_mov_b32 v{B+31}, s63
    v_add_co_u32 v{B+30}, vcc, s62, v{B}
    v_addc_co_u32 v{B+31}, vcc, 0, v{B+31}, vcc
    global_load_dword v{B}, v[{B+30}:{B+31}], off
    """)
    return P


def tag_load(vd, vz, tok="tag"):
    return [I(f"v_mov_b32 v{vz}, 0"), I(f"buffer_load_dword v{vd}, v{vz}, s[72:75], 0 offen sc1", tok=tok)]


def tag_check(lab, vd, vz, vone, slow, tok="tag"):
    slow += L(f"""
    slow_tag{lab}:
    s_mov_b32 s{sCnt}, 0
    spin_tag{lab}:
    buffer_load_dword v{vd}, v{vz}, s[72:75], 0 offen sc1
    s_waitcnt vmcnt(0)
    v_readfirstlane_b32 s{sTag}, v{vd}
    s_add_u32 s{sCnt}, s{sCnt}, 1
    s_cmp_lg_u32 s{sTag}, 0
    s_cbranch_scc1 back_tag{lab}
    s_cmp_lt_u32 s{sCnt}, 0x4000
    s_cbranch_scc1 spin_tag{lab}
    s_branch back_tag{lab}
    """)
    P = [I(f"v_readfirstlane_b32 s{sTag}, v{vd}", needs=[tok])]
    P += L(f"""
    s_cmp_eq_u32 s{sTag}, 0
    s_cbranch_scc1 slow_tag{lab}
    back_tag{lab}:
    v_mov_b32 v{vone}, s{sTag}
    """)
    return P


def ln_poll_addr(vt):
    return L(f"""
    s_lshl_b32 s{sCt}, s{sMt}, 2
    s_add_u32 s{sCt}, s{sCt}, s{sW}
    s_lshl_b32 s{sCt}, s{sCt}, {LNS + 4}
    s_add_u32 s{sCt}, s{sCt}, {FL_LN}
    v_and_b32 v{vt}, 15, v{VL}
    v_lshlrev_b32 v{vt}, {LNS}, v{vt}
    """)


def ln_wait(polls, vt):
    load, check = polls.make(vt, sCt, 0)
    return (stamp(4, 1) + tag_load(vt - 1, VONE, "tag2") + [load]
            + tag_check(polls.prefix, vt - 1, VONE, VONE, polls.slow, "tag2")
            + check[:1] + stamp(5, 1) + check[1:] + stamp(6, 1))


NDC = OPT.get("ndc", 12)


def lane_setup(vl, sw):
    return L(f"""
    v_readfirstlane_b32 s{sw}, v0
    v_and_b32 v{vl}, 63, v0
    s_lshr_b32 s{sw}, s{sw}, 6
    """)


def read_bases(vl, dst, nrange, t0, step=49152):
    P = L(f"""
    v_bfe_u32 v{t0}, v{vl}, 2, 3
    v_lshrrev_b32 v{t0+1}, 5, v{vl}
    v_lshlrev_b32 v{t0+1}, 10, v{t0+1}
    v_lshl_add_u32 v{t0+1}, v{t0}, 7, v{t0+1}
    v_and_b32 v{t0+2}, 3, v{vl}
    v_lshl_add_u32 v{t0+1}, v{t0+2}, 3, v{t0+1}
    v_lshrrev_b32 v{t0}, 1, v{t0}
    """)
    for b in range(4):
        P.append(I(f"v_xor_b32 v{t0+2}, {b}, v{t0}"))
        P.append(I(f"v_lshl_add_u32 v{dst+b}, v{t0+2}, 5, v{t0+1}"))
        for rg in range(1, nrange):
            P.append(I(f"v_add_u32 v{dst+4*rg+b}, {rg*step}, v{dst+b}"))
    return P


def dma_piece(vl, dst, t0):
    return L(f"""
    v_lshrrev_b32 v{t0}, 3, v{vl}
    v_and_b32 v{dst}, 6, v{t0}
    v_and_b32 v{t0+1}, 7, v{vl}
    v_xor_b32 v{dst}, v{dst}, v{t0+1}
    v_lshlrev_b32 v{dst}, 4, v{dst}
    """)


def mfma(d, a, b, c, needs=()):
    return I(f"v_mfma_f32_16x16x32_bf16 {vr(d,4)}, {a}, {b}, {c}", needs=needs)


VL, VW, VW2, VX, VS, RB, T0 = 1, 2, 3, 4, 8, 12, 32
A0, WF, XV = 56, 200, 224
sW, sLds, sMt, sG, sCol, sOff, sX, sH = 16, 17, 18, 19, 20, 21, 32, 40
sHt, sCnt, sPl, sCt, sP, sFl, sH2, sH2x, sC2, sC2x = 3, 4, 5, 6, 7, 37, 60, 61, 62, 63
sP2, sPf, sRd, sOut, sSp = 52, 53, 54, 55, 78
sPq = [7, 52, 53, 79]
A16 = OPT.get("a16", 1)


def xreg(s, r):
    fi = s * 4 + r
    return ar(fi * 4, 4) if fi < 64 else vr(XV + (fi - 64) * 4, 4)


sXr = [44, 45, 46, 47, 48, 49, 50, 51, 32]
sT = [33, 34, 35, 36, 38, 39, 42, 43, 0]
VFO, VONE, VPD = 28, 31, 55
VH = 45
sPitch = 79
sRot = 1
ROT = OPT.get("rot", 1)


def xload(s):
    return [I(f"buffer_load_dwordx4 {xreg(s,r)}, v{VX+r}, s[12:15], s{sXr[s>>1]} offen offset:{1024*(s&1)} sc1",
              tok=("x", s, r)) for r in range(4)]


def rot_table(regs, base, stride, lo=0, hi=9):
    P = []
    for j in range(lo, hi):
        P += L(f"""
        s_add_u32 s22, s{sRot}, {j}
        s_sub_u32 s23, s22, 9
        s_min_u32 s22, s22, s23
        s_mul_i32 s22, s22, {stride}
        s_add_u32 s{regs[j]}, s22, s{base}
        """)
    return P


def k1_common():
    P = dma_piece(VL, VW, T0)
    P += L(f"""
    v_lshrrev_b32 v{T0+1}, 2, v{T0}
    v_and_b32 v{T0}, 3, v{T0}
    v_lshl_add_u32 v{T0}, v{T0+1}, 3, v{T0}
    s_and_b32 s22, s{sW}, 1
    s_lshl_b32 s22, s22, 4
    s_lshr_b32 s23, s{sW}, 1
    s_lshl_b32 s23, s23, 2
    s_add_u32 s22, s22, s23
    v_add_u32 v{T0}, s22, v{T0}
    v_mul_u32_u24 v{T0}, s{sPitch}, v{T0}
    v_add_u32 v{VW}, v{VW}, v{T0}
    v_lshlrev_b32 v{VX}, 4, v{VL}
    v_add_u32 v{VX+1}, 18432, v{VX}
    v_add_u32 v{VX+2}, {2*18432}, v{VX}
    v_add_u32 v{VX+3}, {3*18432}, v{VX}
    s_lshl_b32 s{sLds}, s{sW}, 10
    s_lshl_b32 s22, s{sMt}, 4
    s_lshl_b32 s23, s{sW}, 2
    s_add_u32 s22, s22, s23
    s_mul_i32 s{sX}, s22, 18432
    s_mul_i32 s{sH}, s22, {HRB}
    s_add_u32 s{sH}, s{sH}, {H_OFF}
    """)
    if XN_OFF:
        P.append(I(f"s_add_u32 s{sX}, s{sX}, {XN_OFF}"))
    return P


def k2_setup(t, flip):
    P = dma_piece(VL, VW2, t)
    P += L(f"""
    s_mov_b32 s{sSp}, s46
    {"s_xor_b32 s49, s46, 3" if flip else "s_mov_b32 s49, 0"}
    s_lshl_b32 s47, s49, 5
    s_and_b32 s47, s47, 64
    v_xor_b32 v{VW2}, s47, v{VW2}
    s_lshl_b32 s47, s{sW}, 3
    v_add_u32 v{t}, s47, v{t}
    v_mul_u32_u24 v{t}, 1152, v{t}
    v_add_u32 v{VW2}, v{VW2}, v{t}
    v_lshlrev_b32 v{VS}, 4, v{VL}
    v_add_u32 v{VS+1}, {HRB}, v{VS}
    """)
    if flip:
        P += L(f"""
        s_and_b32 s47, s49, 1
        s_mul_i32 s47, s47, {HRB}
        v_add_u32 v{VH}, s47, v{VS}
        v_subrev_u32 v{VH+1}, s47, v{VS+1}
        """)
    P += L(f"""
    s_mul_i32 s{sC2}, s45, 384
    s_mul_i32 s{sRd}, s44, 3
    s_add_u32 s{sRd}, s{sRd}, s45
    s_lshl_b32 s{sRd}, s{sRd}, 2
    s_add_u32 s{sRd}, s{sRd}, s{sW}
    s_lshl_b32 s{sRd}, s{sRd}, 14
    s_add_u32 s{sRd}, s{sRd}, {PG_OFF}
    s_mul_i32 s48, s46, {PGS}
    s_add_u32 s48, s48, s{sRd}
    """)
    for q in range(4):
        P += L(f"""
        s_xor_b32 s47, s49, {q}
        s_lshl_b32 s47, s47, 12
        s_add_u32 s{sPq[q]}, s48, s47
        """)
    P += L(f"""
    s_lshl_b32 s47, s46, 12
    s_add_u32 s{sRd}, s{sRd}, s47
    s_lshl_b32 s47, s44, 3
    s_lshl_b32 s48, s{sW}, 1
    s_add_u32 s47, s47, s48
    s_mul_i32 s{sH2}, s47, {HRB}
    s_add_u32 s{sH2}, s{sH2}, {H_OFF}
    s_and_b32 s48, s46, 1
    s_add_u32 s48, s48, s47
    s_mul_i32 s{sOut}, s48, 18432
    s_lshr_b32 s48, s46, 1
    s_lshl_b32 s48, s48, 6
    s_add_u32 s{sOut}, s{sOut}, s48
    s_add_u32 s{sOut}, s{sOut}, s{sC2}
    s_lshr_b32 s47, s47, 2
    s_lshl_b32 s{sPl}, s47, 9
    s_add_u32 s{sPl}, s{sPl}, {FL_OFF}
    s_lshl_b32 s47, s{sMt}, 2
    s_add_u32 s47, s47, s{sW}
    s_lshl_b32 s{sFl}, s47, 9
    s_lshl_b32 s47, s{sG}, 2
    s_add_u32 s{sFl}, s{sFl}, s47
    s_add_u32 s{sFl}, s{sFl}, {FL_OFF}
    """)
    return P


class Stream:
    def __init__(self, ring):
        self.ring = ring

    def build(self, phases, pair0, bars, first):
        groups = []
        for pi, ph in enumerate(phases):
            for kp in range(9):
                for bi, blk in enumerate(ph["blocks"]):
                    groups.append((pair0 + pi * 9 + kp, kp, bi, blk, ph))
        npair_end = pair0 + 9 * len(phases)

        def reads(gi):
            gp, kp, bi, blk, ph = groups[gi]
            out = []
            for j in range(2):
                for h in range(2):
                    d = WF + (gi % 3) * 8 + j * 4 + h * 2
                    base, off, lds = blk[0](2 * gp + j, 2 * kp + j, h)
                    out.append(I(f"ds_read_b64_tr_b16 {vr(d,2)}, v{base} offset:{off}", tok=("r", gp, bi, j, h), lds=lds))
            return out

        def bar(gp):
            nxt = min([b for b in bars if b > gp] + [npair_end])
            nxt = min(nxt, npair_end)
            nd = [("w", st) for st in range(2 * gp, 2 * nxt)] + list(bars[gp])
            return I("s_barrier", needs=nd)

        pre = []
        assert pair0 in bars
        pre.append(bar(pair0))
        pre += reads(0) + reads(1)
        slots, items, pairslot = [], [], {}
        for gi, (gp, kp, bi, blk, ph) in enumerate(groups):
            if bi == 0:
                pairslot[gp] = len(slots)
            base = len(slots)
            for r in range(4):
                for j in range(2):
                    s = 2 * kp + j
                    d = blk[1](r)
                    c = "0" if s == 0 else vr(d, 4)
                    nd = []
                    if r == 0 and j == 0:
                        nd.append(("r", gp, bi, 1, 1))
                    if first and gp - pair0 < 9 and bi == 0:
                        nd.append(("x", s, r))
                    w = vr(WF + (gi % 3) * 8 + j * 4, 4)
                    a, b = (xreg(s, r), w) if ph["swap"] else (w, xreg(s, r))
                    slots.append(([], mfma(d, a, b, c, nd)))
            g2 = gi + 2
            if g2 < len(groups):
                if groups[g2][2] == 0 and groups[g2][0] in bars:
                    items.append((base, base, "rd", bar(groups[g2][0])))
                for j, rd in enumerate(reads(g2)):
                    items.append((base + 2 * j, base + 7, "rd", rd))
        assert len(groups) % 3 == 0
        pairslot[npair_end] = len(slots)
        return pre, slots, items, pairslot

    def main_rd(self, b4):
        def f(gstep, s, h):
            lo = (gstep % self.ring) * 4096
            rg, off = divmod(lo, 49152)
            return RB + 4 * rg + b4, off + 2048 * h, (lo, lo + 4096, ("w", gstep))
        return f


def wdma(gstep, ring, srdreg, sbase, soff):
    lo = (gstep % ring) * 4096
    return [I(f"s_add_u32 m0, s{sLds}, {lo}"), I(f"s_add_u32 s{sOff}, s{sbase}, {soff}"),
            I(f"buffer_load_dwordx4 v{VW}, s[{srdreg}:{srdreg+3}], s{sOff} offen lds", tok=("w", gstep),
              lds=(lo, lo + 4096, ("w", gstep)))]


def flat(its):
    out = []
    for it in its:
        out += it if isinstance(it, list) else [it]
    return out


def place_vm(items, plan, pairslot):
    cap = max(pairslot.values()) - 1
    for t, its in sorted(plan.items()):
        s0, s1 = pairslot[t], pairslot[t + 1]
        for j, it in enumerate(its):
            tgt = s0 + ((s1 - s0 - 2) * j) // len(its)
            items.append((tgt, min(s1 + 12, cap), "vm", it))


def glue_scc(M):
    out = []
    for x in M:
        if x.op.startswith("s_cselect"):
            out[-1] = (out[-1] if isinstance(out[-1], list) else [out[-1]]) + [x]
        else:
            out.append(x)
    return out


def pipeline(stages):
    n, depth = len(stages), len(stages[0])
    out = []
    for step in range(n + depth - 1):
        for k in range(depth):
            e = step - k
            if 0 <= e < n:
                out.append(stages[e][k])
    return out


PSC = 'sc0 sc1' if OPT.get('psc', 0) else 'sc1'


class Polls:
    def __init__(self, prefix, vdst):
        self.prefix, self.vdst, self.slow, self.n = prefix, vdst, [], 0

    def make(self, voff, soff, imm):
        k = f"{self.prefix}{self.n}"
        self.n += 1
        ld = f"buffer_load_dword v{self.vdst}, v{voff}, s[12:15], s{soff} offen offset:{imm} {PSC}"
        load = I(ld, tok=("poll", k))
        check = [I(f"v_cmp_ne_u32 vcc, s{sTag}, v{self.vdst}", needs=[("poll", k)]), I("s_nop 1"),
                 I(f"s_cbranch_vccnz slow_{k}"), I(f"back_{k}:")]
        self.slow += L(f"""
        slow_{k}:
        s_mov_b32 s{sCnt}, 0
        spin_{k}:
        {ld}
        s_waitcnt vmcnt(0)
        v_cmp_ne_u32 vcc, s{sTag}, v{self.vdst}
        s_nop 1
        s_cbranch_vccz back_{k}
        s_add_u32 s{sCnt}, s{sCnt}, 1
        s_cmp_lt_u32 s{sCnt}, 0x4000
        s_cbranch_scc1 spin_{k}
        s_branch back_{k}
        """)
        return load, check


K2ACC = [A0 + 4 * i for i in range(8)] + [XV + 4 * i for i in range(8)] + [A0 + 32 + 4 * i for i in range(8)]
K2WF = [184, 192, 200, 208, 216]
AHEAD = 3
RING2 = 12


class Down:
    def __init__(self, pairs, polls, hdepth, vh):
        self.pairs, self.polls, self.hd = pairs, polls, hdepth
        n, nl = len(pairs), OPT.get("nlast", 3)
        self.groups = [(kp, b) for kp in range(n - nl) for b in range(12)]
        self.border = [0, 1, 4, 5, 8, 9, 2, 3, 6, 7, 10, 11]
        self.groups += [(kp, b) for b in self.border for kp in range(n - nl, n)]
        self.barplan = {12 * kp: [kp] for kp in range(n - nl)}
        self.barplan[12 * (n - nl)] = list(range(n - nl, n))
        self.nl = nl
        q = []
        seen = set()
        for kp, pr in enumerate(pairs):
            for j in range(2):
                st = 2 * kp + j
                w, h = [], []
                for pn in range(3):
                    lo = (st % RING2) * 12288 + pn * 4096
                    pre = [I(f"s_add_u32 m0, s{sLds}, {lo - 128 * pn}")]
                    w.append((kp, pre, I(f"buffer_load_dwordx4 v{pr['vw']}, s[{pr['srd']}:{pr['srd']+3}], s{sCt} offen offset:{128*pn} lds",
                                         tok=("w2", st, pn), lds=(lo, lo + 4096, ("w2", st)))))
                for r in range(2):
                    h.append((kp, [], I(f"buffer_load_dwordx4 {self.hreg(st,r)}, v{vh+r}, s[12:15], s{sHt} offen offset:{1024*j} sc1",
                                        tok=("h", st, r))))
                self_ct = I(f"s_add_u32 s{sCt}, s{pr['cbase']}, {(pr['wrow'] + j * pr.get('wstep', 32)) * 1152}")
                q.append(dict(kp=kp, st=st, w=w, h=h, ct=self_ct,
                              ht=I(f"s_add_u32 s{sHt}, s{pr['hbase']}, {pr['hoff']}") if j == 0 else None,
                              stage=pr["stage"] if (j == 0 and pr["stage"] not in seen) else None))
                seen.add(pr["stage"])
        self.steps = q

    def hreg(self, st, r):
        return ar(((st % self.hd) * 2 + r) * 4, 4)

    def w_items(self, st):
        s = self.steps[st]
        out = [s["ct"]]
        for kp, pre, ld in s["w"]:
            out += pre + [ld]
        return out

    def h_items(self, st):
        s = self.steps[st]
        return ([s["ht"]] if s["ht"] else []) + [x[2] for x in s["h"]]

    def reads(self, gi):
        kp, b = self.groups[gi]
        out = []
        for j in range(2):
            st = 2 * kp + j
            lo = (st % RING2) * 12288 + (b >> 2) * 4096
            rg, off = divmod(lo, 49152)
            for h in range(2):
                d = K2WF[gi % 5] + j * 4 + h * 2
                out.append(I(f"ds_read_b64_tr_b16 {vr(d,2)}, v{RB+4*rg+(b&3)} offset:{off+2048*h}", tok=("r2", gi, j, h),
                             lds=(lo, lo + 4096, ("w2", st))))
        return out

    def bar(self, gi):
        sts = [2 * kp + j for kp in self.barplan[gi] for j in range(2)]
        return I("s_barrier", needs=[("w2", st, pn) for st in sts for pn in range(3)]
                 + [("h", st, r) for st in sts for r in range(2)])

    def build(self, base0, nw, nh, pollargs, own, nshare, extra=None, lead=4, stamps=None):
        extra = dict(extra or {})
        own, ownflag = own
        ng = len(self.groups)
        self.tail = []
        epi = []
        GR = A0 + 64
        g0 = ng - 12 * self.nl
        for q in range(nshare):
            for j in range(4):
                t = base0 + 4 * (g0 - 14) + 3 * (4 * q + j)
                epi.append((t, base0 + 4 * g0, "ep", I(f"v_mov_b32 v{GR+(4*q+j)*4+3}, s{sTag}")))
        gfree = 0
        for bi, b in enumerate(self.border):
            half, t = divmod(bi, 6)
            gdone = g0 + (bi + 1) * self.nl
            cv, st_ = [], []
            for r in range(2):
                q = r + 2 * half
                if q >= nshare:
                    continue
                y = K2ACC[b * 2 + r]
                for e in range(2):
                    j, pos = divmod(2 * t + e, 3)
                    cv.append(I(f"v_cvt_pk_bf16_f32 v{GR+(4*q+j)*4+pos}, v{y+2*e}, v{y+2*e+1}"))
                    if pos == 2:
                        st_.append(I(f"buffer_store_dwordx4 {vr(GR+(4*q+j)*4,4)}, v{VX}, s[12:15], s{sPq[q]} offen offset:{1024*j} sc1"))
            if gdone + 1 < ng:
                epi += [(base0 + 4 * (gdone + 1) + j, base0 + 4 * (gdone + 1) + j, "ep", x) for j, x in enumerate(cv)]
            else:
                self.tail += cv
            for sto in st_:
                gfree = max(gfree, gdone + 2)
                if gfree < ng:
                    assert gfree not in extra
                    extra[gfree] = ([], sto)
                    gfree += 1
                else:
                    self.tail.append(sto)
        queue = []
        nst = len(self.steps)
        pend_ct = None
        for st in range(min(nw, nh), nst):
            s = self.steps[st]
            t = s["kp"] - lead
            if st >= nw:
                for i, (kp, pre, ld) in enumerate(s["w"]):
                    if i == 0 and pend_ct != st:
                        pre = [s["ct"]] + pre
                    queue.append((t, pre, ld))
            if st >= nh:
                if s["stage"] is not None:
                    load, check = self.polls.make(*pollargs[s["stage"]])
                    queue.insert(max(len(queue) - 16, 0), (t - 2, [], load))
                    queue.append((t, [], check))
                    if s["stage"] == own:
                        owncheck = check
                for r, (kp, pre, ld) in enumerate(s["h"]):
                    pre = []
                    if r == 0 and s["ht"]:
                        pre = [s["ht"]]
                    if r == 1 and st + 1 < nst and st + 1 >= nw and st >= nw - 1:
                        pre = [self.steps[st + 1]["ct"]]
                        pend_ct = st + 1
                    queue.append((t, pre, ld))
        gm = {}
        for gi in range(len(self.groups)):
            if gi + AHEAD in self.barplan:
                assert gi not in extra
                continue
            if gi in extra:
                gm[gi] = extra.pop(gi)
            elif queue and gi > 12 * queue[0][0] - AHEAD:
                gm[gi] = queue.pop(0)[1:]
                assert not (gm[gi][1] is owncheck and ownflag in extra), "own flag after own-stage wait"
        assert not queue and not extra, (len(queue), extra.keys())
        slots, items = [], []
        for gi, (kp, b) in enumerate(self.groups):
            for r in range(2):
                for j in range(2):
                    st = 2 * kp + j
                    d = K2ACC[b * 2 + r]
                    c = "0" if st == 0 else vr(d, 4)
                    nd = [("r2", gi, 1, 1)] if r == 0 and j == 0 else []
                    pre = stamp(stamps[kp]) if stamps and kp in stamps and b == 0 and r == 0 and j == 0 else []
                    slots.append((pre, mfma(d, vr(K2WF[gi % 5] + j * 4, 4), self.hreg(st, r), c, nd)))
            g2 = gi + AHEAD
            base = base0 + 4 * gi
            gaps = [0, 1, 2, 3]
            if gi in gm:
                pre, ld = gm[gi]
                if pre:
                    items.append((base, base, "vm", pre))
                items.append((base + 1, base + 1, "vm", ld))
                gaps = [0, 2, 2, 3]
            if g2 < len(self.groups):
                if g2 in self.barplan:
                    items.append((base, base, "rd", self.bar(g2)))
                    gaps = [1, 2, 2, 3]
                for j, rd in enumerate(self.reads(g2)):
                    items.append((base + gaps[j], base + gaps[j], "rd", rd))
        return slots, items + epi


def ffn():
    X, Y = A0, A0 + 64
    RING = 36
    VPO = 26
    P = []
    st = Stream(RING)

    def dma(gs):
        ph, s = divmod(gs, 18)
        return wdma(gs, RING, 8 if ph % 2 == 0 else 24, sT[s >> 1], (s & 1) * 32 * 9216 + (ph // 2) * 128)

    polls = Polls("f", VPD)
    NPRE = OPT.get("npre1", 3)
    ND1 = OPT.get("nd1", 18)
    TM = 42
    M = []
    M += L(f"""
    s_mul_i32 s22, s{sG}, 6144
    s_add_u32 s{sH}, s{sH}, s22
    s_add_u32 s{sH+1}, s{sH}, 4096
    s_lshr_b32 s22, s2, 3
    s_sub_u32 s22, s22, 8
    s_mul_i32 s44, s22, 171
    s_lshr_b32 s44, s44, 9
    s_mul_i32 s45, s44, 3
    s_sub_u32 s45, s22, s45
    s_and_b32 s22, s2, 1
    s_lshl_b32 s22, s22, 3
    s_add_u32 s44, s44, s22
    s_bfe_u32 s46, s2, 0x20001
    """)
    M += k2_setup(TM, True)
    M += L(f"""
    v_add_u32 v{VS+2}, {2*HRB}, v{VS}
    v_add_u32 v{VS+3}, {3*HRB}, v{VS}
    s_mul_i32 s47, s46, {6*1024}
    s_add_u32 s{sH2x}, s{sH2}, s47
    s_mul_i32 s47, s46, {6*36864}
    s_add_u32 s{sC2x}, s{sC2}, s47
    s_mul_i32 s47, s46, {30*1024}
    s_add_u32 s{sH2}, s{sH2}, s47
    s_mul_i32 s47, s46, {30*36864}
    s_add_u32 s{sC2}, s{sC2}, s47
    s_mul_i32 s47, s46, 5
    v_min_u32 v{VPO}, 4, v{VL}
    v_add_u32 v{VPO}, s47, v{VPO}
    s_add_u32 s47, s46, 20
    v_mov_b32 v{TM}, s47
    v_cmp_lt_u32 vcc, 4, v{VL}
    """)
    if A16:
        M.append(I(f"v_cndmask_b32 v{VPO}, v{VPO}, v{TM}, vcc"))
    M.append(I(f"v_lshlrev_b32 v{VPO}, 2, v{VPO}"))
    M += L(f"""
    s_sub_u32 s22, s2, 64
    s_lshl_b32 s22, s22, 2
    s_add_u32 s22, s22, s{sW}
    s_lshl_b32 s22, s22, 13
    v_lshlrev_b32 v{T0+9}, 5, v{VL}
    v_add_u32 v{T0+9}, s22, v{T0+9}
    """)
    M = glue_scc(M)
    for gs in range(NDC, ND1):
        P += dma(gs)
    if OPT.get("pfu", 0):
        P += L(f"""
        s_cmp_lt_u32 s5, 128
        s_cbranch_scc1 no_pfu
        v_mul_u32_u24 v{LB0}, 9216, v0
        v_add_u32 v{LB0}, s{sCol}, v{LB0}
        v_add_u32 v{LB0+1}, {256*9216}, v{LB0}
        v_add_u32 v{LB0+2}, {512*9216}, v{LB0}
        """)
        for i in range(3):
            P.append(I(f"buffer_load_dword v{LB0+3}, v{LB0+i}, s[24:27], 0 offen", count=False))
        P.append(I("no_pfu:"))
    P += ln_wait(polls, T0 + 7)
    P += stamp(2)
    for gp in range(NPRE):
        P += xload(2 * gp) + xload(2 * gp + 1)

    phases = []
    for ph in range(6):
        base = X if ph % 2 == 0 else Y
        phases.append(dict(swap=False, blocks=[(st.main_rd(b), (lambda r, b=b, base=base: base + (b * 4 + r) * 4))
                                               for b in range(4)]))
    BE = OPT.get("be", 3)
    bars = {gp: [] for gp in range(54) if gp % BE == 0 or gp in (39, 42, 44, 46, 48, 51)}
    pre, slots, items, pairslot = st.build(phases, 0, bars, True)
    plan = {}
    for gp in range(NPRE, 9):
        plan[gp - NPRE] = xload(2 * gp) + xload(2 * gp + 1)
    gs = ND1
    LEAD = OPT.get("lead1", 12)
    for t in range(0, 54):
        cap = OPT.get("gcap", 6) if t < 9 else (3 if (t // 9) % 2 == 0 or t < 18 else 2)
        if t < 9 - NPRE:
            cap = OPT.get("g0cap", 0)
        while cap and gs < min(108, 2 * (t + LEAD + 1)):
            plan.setdefault(t, []).extend(dma(gs))
            gs += 1
            cap -= 1
    assert gs == 108
    if OPT.get("pf2", 1):
        for i, t in enumerate((20, 23, 26, 37)):
            plan.setdefault(t, []).extend([I(f"buffer_load_dword v{T0+8}, v{T0+9}, s[28:31], 0 offen offset:{2048*(i&1)}")]
                                          + ([I(f"v_add_u32 v{T0+9}, 4096, v{T0+9}")] if i == 1 else []))

    pairs = [dict(hbase=sH2, hoff=(6 * (j % 5) + 2 * (j // 5)) * 1024, cbase=sC2, wrow=(6 * (j % 5) + 2 * (j // 5)) * 32,
                  srd=28, vw=VW2, stage=j // 5) for j in range(15)]
    if A16:
        pairs.append(dict(hbase=sH2x, hoff=124 * 1024, cbase=sC2x, wrow=124 * 32, srd=28, vw=VW2, stage=2))
    dn = Down(pairs, polls, 32, VH)
    pollargs = {s: (VPO, sPl, 128 * s) for s in range(3)}
    NW, NH = OPT.get("nw", 9), OPT.get("nh", 10)
    for i, t in enumerate((40, 42, 43, 44, 45, 46, 48, 51, 52)[:NW]):
        plan.setdefault(t, []).extend(dn.w_items(i))
    load, check = polls.make(*pollargs[0])
    plan.setdefault(43, []).append(load)
    plan.setdefault(46, []).append(check)
    assert NH <= 10
    for i in range(NH):
        t = (47, 47, 48, 49, 49, 50, 50, 51, 52, 53)[i]
        assert 45 + i // 4 < t
        plan.setdefault(t, []).extend(dn.h_items(i))

    def flag(stage, needs):
        return I(f"buffer_store_dword v{VONE}, v{VFO}, s[12:15], s{sFl} offen offset:{128*stage} sc1", needs=needs)

    for p in range(2):
        plan.setdefault(18 * p + 18 + OPT.get("ft", 14) - 2 * p, []).append(flag(p, [("hs", p, 1, 3)]))
    place_vm(items, plan, pairslot)
    for j, it in enumerate(M):
        items.append((pairslot[10 - NPRE] + 14 + j // 2, pairslot[17], "su", it))

    def silu(p):
        st5 = []
        for e in range(64):
            x, t = X + e, T0 + e % 8
            st5.append([I(f"v_exp_f32 v{t}, -v{x}"), I(f"v_add_f32 v{t}, 1.0, v{t}"), I(f"v_rcp_f32 v{t}, v{t}"),
                        I(f"v_mul_f32 v{x}, v{x}, v{t}")])
        return pipeline(st5)

    def muls(b):
        return [I(f"v_mul_f32 v{Y+16*b+e}, v{X+16*b+e}, v{Y+16*b+e}") for e in range(16)]

    def pack(p, c, r):
        y, z = Y + (2 * c * 4 + r) * 4, Y + ((2 * c + 1) * 4 + r) * 4
        f = 2 * p + c
        return L(f"""
        v_cvt_pk_bf16_f32 v{y}, v{y}, v{y+1}
        v_cvt_pk_bf16_f32 v{y+1}, v{y+2}, v{y+3}
        v_cvt_pk_bf16_f32 v{y+2}, v{z}, v{z+1}
        v_cvt_pk_bf16_f32 v{y+3}, v{z+2}, v{z+3}
        """), I(f"buffer_store_dwordx4 {vr(y,4)}, v{VS+r}, s[12:15], s{sH+(f>>2)} offen offset:{1024*(f&3)} sc1",
                tok=("hs", p, c, r))

    extra = {}
    n1 = len(slots)
    for p in range(3):
        u0 = pairslot[(2 * p + 1) * 9]
        u1 = pairslot[(2 * p + 2) * 9]
        sl = silu(p)
        for j, it in enumerate(sl):
            blk = max(r - X for r in [int(q[1:]) for q in (it.R | it.W)] + [X] if X <= r < X + 64) // 16
            dl = u1 - 22 + 8 * (blk if it.op == "v_mul_f32" else 3)
            items.append((u0 + 1 + j * 15 // 16, dl, "va", it))
        for b in range(4):
            t0 = u1 - 32 + 8 * (b + 1) + 3
            dl = u1 + 8 * b - 2 if p < 2 else u1 + [-2, 6, 22, 30][b]
            for j, it in enumerate(muls(b)):
                items.append((t0 + j // 2, dl if p < 2 else min(dl, t0 + j + 6), "vb", it))
        k = 0
        for c in range(2):
            for r in range(4):
                cv, sto = pack(p, c, r)
                if p < 2:
                    for j, it in enumerate(cv + [sto]):
                        items.append((u1 + 30 + OPT.get("ssp", 5) * (5 * k + j), u1 + 280, "vb", it))
                else:
                    g = [7, 8, 10, 11, 12, 13, 14, 15][k]
                    for j, it in enumerate(cv):
                        items.append((u1 + 4 * (g - 1) + j, u1 + 4 * (g - 1) + j, "vb", it))
                    extra[g] = ([], sto)
                k += 1
    extra[40] = ([], flag(2, [("hs", 2, 1, 3)]))
    VOUT = 24
    gx = 12 * (len(pairs) - 3)
    fin = L(f"""
    v_and_b32 v{VOUT}, 15, v{VL}
    v_mul_u32_u24 v{VOUT}, 1152, v{VOUT}
    v_bfe_u32 v{T0}, v{VL}, 4, 1
    v_lshl_add_u32 v{VOUT}, v{T0}, 5, v{VOUT}
    v_lshrrev_b32 v{T0}, 5, v{VL}
    v_lshl_add_u32 v{VOUT}, v{T0}, 4, v{VOUT}
    """)
    fin2 = L(f"""
    s_add_u32 s22, s{sSp}, 1
    v_and_b32 v{VPO}, 3, v{VL}
    v_add_u32 v{VPO}, s22, v{VPO}
    v_subrev_u32 v{T0}, 5, v{VPO}
    v_min_u32 v{VPO}, v{VPO}, v{T0}
    s_mov_b32 s22, {PGS}
    v_mul_lo_u32 v{VPO}, v{VPO}, s22
    s_mov_b32 s23, {f32(LN2*LN2)}
    s_mov_b32 s38, 0x3f80
    s_mov_b32 s39, 0x3f800000
    """)
    for i in range(4):
        fin2 += L(f"""
        s_add_u32 s22, s{sSp}, {1+i}
        s_sub_u32 s42, s22, 5
        s_min_u32 s22, s22, s42
        s_mul_i32 s22, s22, {PGS}
        s_add_u32 s{33+i}, s22, s{sRd}
        """)
    XR, XF = Y + 48, 184
    for j, it in enumerate(fin):
        items.append((n1 + 4 * gx + j, n1 + 4 * gx + 11, "vb", it))
    for j, it in enumerate(fin2):
        items.append((n1 + 4 * gx + 12 + 2 * j, n1 + 4 * gx + 120, "vb", it))
    for i in range(3):
        extra[gx + 4 + i] = ([], I(f"buffer_load_dwordx4 {vr(XR+4*i,4)}, v{VOUT}, s[64:67], s{sOut} offen offset:{128*i}",
                                   tok=("xr", i)))
    s2, i2 = dn.build(n1, NW, NH, pollargs, (2, 40), 3, extra=extra, lead=OPT.get("lead2", 4), stamps=({0: 2, 3: 3, 6: 4, 9: 5, 12: 6} if OPT.get('g0st') == 3 else {} if OPT.get('g0st') else {0: 5, 5: 6}))
    items.append((n1 - 16, n1 - 16, "rd", dn.bar(0)))
    for gi in range(AHEAD):
        for j, rd in enumerate(dn.reads(gi)):
            t = n1 - 15 + 4 * gi + j + (1 if gi == 2 else 0)
            items.append((t, t + 2, "rd", rd))
    sp_ = {9: 3, 27: 4}
    if OPT.get("g0st"):
        sp_ = {gp: 3 + i for i, gp in enumerate([1, 3, 5, 7, 9, 12][:4] if OPT["g0st"] == 1 else [9, 18, 27, 36])}
    if OPT.get("g0st") == 3:
        sp_ = {45: 1}
    for gp, sidx in sp_.items():
        sl = pairslot[gp]
        slots[sl] = (stamp(sidx), slots[sl][1])
    P += pre
    P += weave(slots + s2, items + i2, prio={"rd": 1000, "vm": 8}, report="ffn")
    P += stamp(7)
    P += dn.tail
    load, check = polls.make(VPO, sRd, 4092)
    P.append(load)
    for i in range(3):
        for d in range(4):
            P.append(I(f"v_lshlrev_b32 v{XF+8*i+2*d}, 16, v{XR+4*i+d}", needs=[("xr", i)]))
            P.append(I(f"v_and_b32 v{XF+8*i+2*d+1}, 0xffff0000, v{XR+4*i+d}"))
    P += check
    P += stamp(8)
    PR = Y
    lds_ = {}
    for i in range(4):
        lds_[i] = [f"buffer_load_dwordx4 {vr(PR+(i*4+j)*4,4)}, v{VX}, s[12:15], s{33+i} offen offset:{1024*j} sc1" for j in range(4)]
        for j in range(4):
            P.append(I(lds_[i][j], tok=("pl", i, j)))
    own = [K2ACC[b * 2 + 1] for b in dn.border[6:]]
    for i in range(4):
        tg = [PR + (i * 4 + j) * 4 + 3 for j in range(4)]
        chk = f"""
        v_cmp_ne_u32 s[44:45], s{sTag}, v{tg[1]}
        v_cmp_ne_u32 s[46:47], s{sTag}, v{tg[2]}
        v_cmp_ne_u32 s[48:49], s{sTag}, v{tg[3]}
        s_or_b64 s[44:45], s[44:45], vcc
        s_or_b64 s[46:47], s[46:47], s[48:49]
        s_or_b64 s[44:45], s[44:45], s[46:47]
        """
        P.append(I(f"v_cmp_ne_u32 vcc, s{sTag}, v{tg[0]}", needs=[("pl", i, 3)]))
        P += L(chk + f"s_cbranch_scc1 slow_g{i}\nback_g{i}:")
        nl_ = "\n".join(lds_[i])
        polls.slow += L(f"""
        slow_g{i}:
        s_mov_b32 s{sCnt}, 0
        spin_g{i}:
        {nl_}
        s_waitcnt vmcnt(0)
        v_cmp_ne_u32 vcc, s{sTag}, v{tg[0]}
        {chk}
        s_cbranch_scc0 back_g{i}
        s_add_u32 s{sCnt}, s{sCnt}, 1
        s_cmp_lt_u32 s{sCnt}, 0x4000
        s_cbranch_scc1 spin_g{i}
        s_branch back_g{i}
        """)
        for k in range(12):
            j, pos = divmod(k, 3)
            src, o = PR + (i * 4 + j) * 4 + pos, own[k >> 1] + 2 * (k & 1)
            if OPT.get("dot", 1):
                P.append(I(f"v_dot2_f32_bf16 v{o}, v{src}, s38, v{o}"))
                P.append(I(f"v_dot2_f32_bf16 v{o+1}, v{src}, s39, v{o+1}"))
            else:
                t = T0 + 2 * (k & 1)
                P += L(f"""
                v_lshlrev_b32 v{t}, 16, v{src}
                v_and_b32 v{t+1}, 0xffff0000, v{src}
                v_add_f32 v{o}, v{o}, v{t}
                v_add_f32 v{o+1}, v{o+1}, v{t+1}
                """)
    OR = 208
    for i in range(3):
        p_, q_, xf = own[2 * i], own[2 * i + 1], XF + 8 * i
        P += [I(f"v_permlane16_swap_b32 v{p_+e}, v{q_+e}") for e in range(4)]
        P += [I(f"v_fmac_f32 v{xf+e}, s23, v{(p_ if e < 4 else q_ - 4)+e}") for e in range(8)]
        P += [I(f"v_cvt_pk_bf16_f32 v{OR+4*i+d}, v{xf+2*d}, v{xf+2*d+1}") for d in range(4)]
        P.append(I(f"buffer_store_dwordx4 {vr(OR+4*i,4)}, v{VOUT}, s[68:71], s{sOut} offen offset:{128*i}{OSC}"))
    P += stamp_dump(1, sW, last=9)
    return P, polls.slow


KVT = [(0, 0), (1, 0), (0, 1), (1, 1), (2, 1), (1, 2), (2, 2), (3, 2), (2, 3), (3, 3), (4, 3), (3, 4), (4, 4),
       (0, 4), (1, 4), (2, 4)]
AFR = [(0, 0), (1, 0), (1, 1), (2, 0), (2, 1), (3, 1), (3, 2), (4, 1), (4, 2)]


def att():
    KA, VA = A0, A0 + 80
    RING = 20
    QL, KL = 81920, 94208
    SCR = KL
    VKL, VQL, RKL, RQL, VFL, LB = 24, 25, 26, 27, 28, 40
    VPO, VPO2, VSO, VW2L, VLO, VPK = 10, 11, 44, 48, 49, 54
    sK, sK1 = 61, 63
    sHr = [sH, sH + 1, 24, 25]
    assert VFL == VFO
    P = L(f"""
    v_lshrrev_b32 v{T0}, 1, v{VL}
    v_and_b32 v{T0+1}, 31, v{VL}
    """)

    def rowof(src, dst, t):
        return L(f"""
        v_bfe_u32 v{t}, v{src}, 2, 2
        v_and_b32 v{dst}, 3, v{src}
        v_lshl_add_u32 v{dst}, v{t}, 3, v{dst}
        v_lshrrev_b32 v{t}, 4, v{src}
        v_lshl_add_u32 v{dst}, v{t}, 2, v{dst}
        """)

    P += rowof(T0, VKL, T0 + 2)
    P += rowof(T0 + 1, VQL, T0 + 2)
    P += L(f"""
    v_mul_u32_u24 v{VKL}, 3456, v{VKL}
    v_and_b32 v{T0}, 1, v{VL}
    v_mul_u32_u24 v{T0}, 1152, v{T0}
    v_add_u32 v{VKL}, v{VKL}, v{T0}
    v_add_u32 v{VKL}, 128, v{VKL}
    """)
    st = Stream(RING)
    MOFF = [0, 1152, (-1152) & 0xffffffff]

    def dma(gs):
        ph, s = divmod(gs, 18)
        return wdma(gs, RING, 8, sT[s >> 1], ((s & 1) * 32 * 3456 + MOFF[ph]) & 0xffffffff)

    def kl_dma(i):
        return L(f"""
                s_add_u32 s22, s{sW}, {4*i}
                s_lshl_b32 s23, s22, 10
                s_add_u32 m0, s23, {KL}
                s_min_u32 s22, s22, 17
                s_add_u32 s22, s22, s{sRot}
                s_add_u32 s22, s22, s{sRot}
                s_sub_u32 s23, s22, 18
                s_min_u32 s22, s22, s23
                s_mul_i32 s22, s22, {32*3456}
                s_add_u32 s22, s22, s{sCol}
                """) + [I(f"buffer_load_dwordx4 v{VKL}, s[8:11], s22 offen lds", tok=("kl", i),
                          lds=(KL + 4096 * i, KL + 4096 * (i + 1), "kl"))]

    def ql_dma(i):
        return L(f"""
                s_add_u32 s22, s{sW}, {4*i}
                s_lshl_b32 s23, s22, 10
                s_add_u32 m0, s23, {QL}
                s_min_u32 s22, s22, 8
                s_add_u32 s22, s22, s{sRot}
                s_sub_u32 s23, s22, 9
                s_min_u32 s22, s22, s23
                s_mul_i32 s22, s22, {64*3456}
                s_add_u32 s22, s22, s{sCol}
                s_sub_u32 s22, s22, 1152
                """) + [I(f"buffer_load_dwordx4 v{VQL}, s[8:11], s22 offen lds", tok=("ql", i),
                          lds=(QL + 4096 * i, QL + 4096 * (i + 1), "ql"))]

    polls = Polls("a", VPD)
    NPRE = OPT.get("npre1a", 3)
    ND1 = OPT.get("nd1a", 18)
    NKL = OPT.get("nkl", 3)
    P += L(f"""
    v_lshlrev_b32 v{RKL}, 3, v{VL}
    v_add_u32 v{RKL}, {KL}, v{RKL}
    """)
    M = []
    M += L(f"""
    v_lshrrev_b32 v{T0}, 5, v{VL}
    v_lshl_add_u32 v{VQL}, v{T0}, 5, v{VQL}
    v_mul_u32_u24 v{VQL}, 3456, v{VQL}
    v_add_u32 v{VQL}, 128, v{VQL}
    v_lshrrev_b32 v{RQL}, 2, v{VL}
    v_lshlrev_b32 v{RQL}, 4, v{RQL}
    v_and_b32 v{T0}, 1, v{VL}
    v_lshl_add_u32 v{RQL}, v{T0}, 3, v{RQL}
    v_add_u32 v{RQL}, {QL}, v{RQL}
    s_lshl_b32 s22, s2, 2
    s_add_u32 s22, s22, s{sW}
    s_lshl_b32 s22, s22, 13
    v_lshlrev_b32 v{VPK}, 7, v{VL}
    v_add_u32 v{VPK}, s22, v{VPK}
    s_lshr_b32 s22, s2, 3
    s_cmp_ge_u32 s22, 3
    s_cselect_b32 s44, 1, 0
    s_mul_i32 s45, s44, 3
    s_sub_u32 s45, s22, s45
    s_and_b32 s22, s2, 7
    s_lshl_b32 s22, s22, 1
    s_add_u32 s44, s44, s22
    s_mov_b32 s46, 4
    """)
    M += k2_setup(T0, False)
    M += dma_piece(VL, VW2L, T0)
    M += L(f"""
    s_and_b32 s22, s{sW}, 1
    s_mul_i32 s22, s22, 144
    s_lshr_b32 s23, s{sW}, 1
    s_lshl_b32 s23, s23, 2
    s_add_u32 s22, s22, s23
    s_add_u32 s22, s22, 64
    v_lshrrev_b32 v{T0+1}, 2, v{T0}
    v_mul_u32_u24 v{T0+1}, 72, v{T0+1}
    v_and_b32 v{T0}, 3, v{T0}
    v_add3_u32 v{T0}, v{T0}, v{T0+1}, s22
    v_mul_u32_u24 v{T0}, 1152, v{T0}
    v_add_u32 v{VW2L}, v{VW2L}, v{T0}
    v_and_b32 v{VPO}, 3, v{VL}
    v_lshl_add_u32 v{VPO}, v{VPO}, 2, 64
    v_add_u32 v{VPO}, 16, v{VPO}
    v_and_b32 v{VPO2}, 7, v{VL}
    v_lshlrev_b32 v{VPO2}, 2, v{VPO2}
    """)
    if not OPT.get("lv", 1):
        P += kl_dma(0) + kl_dma(1)
    for gs in range(NDC, ND1):
        P += dma(gs)
    if not OPT.get("lv", 1):
        for i in range(2, NKL):
            P += kl_dma(i)
    if OPT.get("pfv", 0):
        P += L(f"""
        s_and_b32 s22, s{sMt}, 3
        s_mul_i32 s22, s22, 144
        v_lshrrev_b32 v{LB0}, 1, v0
        v_add_u32 v{LB0}, s22, v{LB0}
        v_mul_u32_u24 v{LB0}, 3456, v{LB0}
        v_and_b32 v{LB0+1}, 1, v0
        v_lshl_add_u32 v{LB0}, v{LB0+1}, 7, v{LB0}
        buffer_load_dword v{LB0+3}, v{LB0}, s[8:11], s{sCol} offen offset:1152
        """)
    P += ln_wait(polls, T0 + 7)
    P += stamp(2)
    for gp in range(NPRE):
        P += xload(2 * gp) + xload(2 * gp + 1)

    def tile(base, T, r):
        return base + (T * 4 + r) * 4

    def klrd(gstep, s, h):
        return RKL, s * 1024 + h * 512, (KL + s * 1024, KL + s * 1024 + 1024, "kl")

    def qlrd(gstep, s, h):
        return RQL, s * 512 + h * 256, (QL + s * 512, QL + s * 512 + 512, "ql")

    LV = OPT.get("lv", 1)
    lblk = [(klrd, lambda r: tile(KA, 4, r))]
    phK = dict(swap=True, blocks=[(st.main_rd(b), (lambda r, b=b: tile(KA, b, r))) for b in range(4)] + ([] if LV else lblk))
    phV = dict(swap=True, blocks=(lblk if LV else []) + [(st.main_rd(b), (lambda r, b=b: tile(VA, b, r))) for b in range(4)])
    phQ = dict(swap=False, blocks=[(st.main_rd(b), (lambda r, b=b: tile(KA, b, r))) for b in range(4)]
               + [(qlrd, lambda r: tile(KA, 4, r))])
    bars = {gp: [] for gp in range(18)}
    for gp in range(0, 9, 2):
        bars[gp + 9 * LV] = [("kl", gp // 2)]
    pre, slots, items, pairslot = st.build([phK, phV], 0, bars, True)
    plan = {}
    for gp in range(NPRE, 9):
        plan[gp - NPRE] = (kl_dma(gp // 2) if gp % 2 == 0 and gp >= 2 * NKL and not LV else []) + xload(2 * gp) + xload(2 * gp + 1)
    gs = ND1
    for t in range(0, 18):
        cap = (OPT.get("k0cap", 0) if t < 9 - NPRE else 6) if t < 9 else 4
        while cap and gs < 2 * (t + 9):
            plan.setdefault(t, []).extend(dma(gs))
            gs += 1
            cap -= 1
    assert gs == 52, gs
    if LV:
        for i in range(5):
            plan[6 + (i * 3) // 2] += kl_dma(i)
    for i in range(3):
        plan[14 + i] += ql_dma(i)
    if OPT.get("pf2", 1) == 1:
        plan[13].append(I(f"buffer_load_dword v{VPD}, v{VPK}, s[56:59], 0 offen"))
    place_vm(items, plan, pairslot)
    M = [I(x.text.replace("s22", "s50").replace("s23", "s51")) for x in M]
    M2 = glue_scc(M)
    for j, it in enumerate(M2):
        items.append((pairslot[10 - NPRE] + 14 + j // 3, pairslot[9] + 2, "su", it))

    EPS = f32(1e-6)

    def phi(regs):
        st4 = []
        for e, x in enumerate(regs):
            t = T0 + e % 8
            st4.append([I(f"v_exp_f32 v{t}, v{x} clamp"), I(f"v_fmaak_f32 v{x}, v{VFL+1}, v{x}, {EPS}"),
                        I(f"v_max_f32 v{x}, {EPS}, v{x}"), I(f"v_add_f32 v{x}, v{x}, v{t}")])
        return pipeline(st4)

    def pack(dst, y, z):
        out = [I(f"v_cvt_pk_bf16_f32 v{dst}, v{y}, v{y+1}"), I(f"v_cvt_pk_bf16_f32 v{dst+1}, v{y+2}, v{y+3}")]
        if z is None:
            out += [I(f"v_mov_b32 v{dst+2}, 0"), I(f"v_mov_b32 v{dst+3}, 0")]
        else:
            out += [I(f"v_cvt_pk_bf16_f32 v{dst+2}, v{z}, v{z+1}"), I(f"v_cvt_pk_bf16_f32 v{dst+3}, v{z+2}, v{z+3}")]
        return out

    fl = L(f"""
    v_mov_b32 v{VFL+1}, {f32(LN2)}
    v_mov_b32 v{VFL+2}, 0x3f803f80
    v_and_b32 v{T0}, 8, v{VL}
    v_cmp_eq_u32 s[26:27], 0, v{T0}
    """)
    fL = []
    for c in range(2):
        fL += pack(LB + 4 * c, tile(KA, 4, 2 * c), tile(KA, 4, 2 * c + 1))
    fL += [I(f"v_cndmask_b32 v{LB+e}, v{LB+e}, v{VFL+2}, s[26:27]") for e in range(8)]
    for c in range(2):
        y = tile(KA, 4, 2 * c)
        fL += phi(list(range(y, y + 8))) + pack(y, y, y + 4)
    for T in range(4):
        for c in range(2):
            y = tile(KA, T, 2 * c)
            fl += phi(list(range(y, y + 8)))
            fl += pack(y, y, y + 4)
    v0s, v1s = pairslot[9], pairslot[18]
    if not LV:
        fl += fL
    for j, it in enumerate(fl):
        items.append((v0s + 4 + (v1s - v0s - 60) * j // len(fl), v1s - 1, "va", it))
    if LV:
        for j, it in enumerate(fL):
            items.append((v1s - 28, v1s - 1, "va", it))
        items.append((v1s - 12, v1s - 12, "rd", I("s_barrier")))
    slots[v0s] = (stamp(3), slots[v0s][1])
    P += pre
    P += weave(slots, items, prio={"rd": 1000, "vm": 8}, report="att kv")

    P += L(f"""
    s_lshl_b32 s22, s{sW}, 14
    s_add_u32 s22, s22, {SCR}
    v_lshl_add_u32 v{VKL}, v{VL}, 4, s22
    s_lshl_b32 s22, s{sW}, 12
    s_add_u32 s22, s22, {SCR}
    v_lshl_add_u32 v{RKL}, v{VL}, 4, s22
    s_lshl_b32 s23, s{sG}, 16
    s_lshl_b32 s22, s{sW}, 11
    s_add_u32 s{sK}, s23, s22
    s_add_u32 s{sK}, s{sK}, {KVP_OFF}
    s_lshl_b32 s22, s{sMt}, 13
    s_add_u32 s{sK1}, s{sK}, s22
    """)
    for T in range(4):
        for c in range(2):
            y = tile(VA, T, 2 * c)
            P += pack(y, y, y + 4)
    free = [tile(KA, T, r) for T in range(5) for r in (1, 3)] + [tile(VA, T, r) for T in range(4) for r in (1, 3)]
    kvacc = free[:16]
    sl2, it2 = [], []
    for ti, (dT, eT) in enumerate(KVT):
        for c in range(2):
            a = vr(tile(KA, dT, 2 * c), 4)
            b = vr(tile(VA, eT, 2 * c), 4) if eT < 4 else vr(LB + 4 * c, 4)
            sl2.append(([], mfma(kvacc[ti], a, b, "0" if c == 0 else vr(kvacc[ti], 4))))
        it2.append((2 * ti + 9, 2 * ti + 9, "dw",
                    I(f"ds_write_b128 v{VKL}, {vr(kvacc[ti],4)} offset:{1024*ti}", lds=(SCR, SCR + 65536, "kv1"))))
    P += weave(sl2, it2)
    P.append(Sync(vm=False))
    P += stamp(4)

    bars = {gp: [] for gp in range(18, 27)}
    bars[18] = [("ql", i) for i in range(3)]
    pre, slots, items, pairslot = st.build([phQ], 18, bars, False)
    plan = {18: dma(52) + dma(53)}
    fl = []
    for j in range(4):
        for w2 in range(4):
            items.append((1 + 2 * (4 * j + w2), 40, "kr",
                          I(f"ds_read_b128 {vr(VA+(j*4+w2)*4,4)}, v{RKL} offset:{16384*w2+1024*j}", tok=("kr", j, w2),
                            lds=(SCR, SCR + 65536, "kv1"))))
    t = 42
    for j in range(4):
        b = VA + j * 16
        for e in range(4):
            fl.append((t, I(f"v_add_f32 v{b+e}, v{b+e}, v{b+4+e}", needs=[("kr", j, 3)] if e == 0 else [])))
            fl.append((t, I(f"v_add_f32 v{b+8+e}, v{b+8+e}, v{b+12+e}")))
        for e in range(4):
            fl.append((t, I(f"v_add_f32 v{b+e}, v{b+e}, v{b+8+e}")))
        if j % 2:
            y = VA + (j - 1) * 16
            fl += [(t, x) for x in pack(y, y, b)]
            fl.append((t, I(f"buffer_store_dwordx4 {vr(y,4)}, v{VX}, s[12:15], s{sK1} offen offset:{512*(j-1)} sc1",
                            tok=("ks", j // 2))))
    fl += [(t, x) for x in L(f"""
    s_lshl_b32 s22, s{sG}, 7
    s_add_u32 s{sCt}, s22, {FL_KV}
    s_lshl_b32 s22, s{sMt}, 4
    s_lshl_b32 s23, s{sW}, 2
    s_add_u32 s22, s22, s23
    s_add_u32 s{sHt}, s22, s{sCt}
    v_and_b32 v{VPK}, 31, v{VL}
    v_lshlrev_b32 v{VPK}, 2, v{VPK}
    v_lshrrev_b32 v{T0}, 4, v{VL}
    v_and_b32 v{T0+1}, 15, v{VL}
    """)]
    for eT in range(5):
        fl += [(t, x) for x in L(f"""
        v_add_u32 v{T0+3}, {16*eT if eT < 4 else 56}, v{T0+1}
        v_mul_u32_u24 v{T0+3}, 3641, v{T0+3}
        v_lshrrev_b32 v{T0+3}, 16, v{T0+3}
        v_mul_u32_u24 v{T0+3}, 18, v{T0+3}
        v_lshlrev_b32 v{T0+4}, 2, v{T0}
        v_sub_u32 v{VLO+eT}, v{T0+3}, v{T0+4}
        """)]
    fl += [(t, x) for x in L(f"""
    s_lshr_b32 s22, s{sG}, 2
    s_lshl_b32 s22, s22, 10
    s_and_b32 s23, s{sG}, 3
    s_lshl_b32 s23, s23, 8
    s_add_u32 s22, s22, s23
    s_lshl_b32 s23, s{sG}, 11
    s_sub_u32 s22, s22, s23
    s_add_u32 s22, s22, {16*1024 - 16}
    v_lshlrev_b32 v{VSO}, 4, v{T0+1}
    v_lshl_add_u32 v{VSO}, v{T0}, 3, v{VSO}
    v_add_u32 v{VSO}, s22, v{VSO}
    v_cmp_gt_u32 vcc, 32, v{VL}
    v_mov_b32 v{T0+3}, {BIG}
    v_cndmask_b32 v{VSO}, v{VSO}, v{T0+3}, vcc
    s_add_u32 s{sH}, s{sH}, s23
    s_add_u32 s{sH}, s{sH}, {144*1024}
    s_add_u32 s{sH+1}, s{sH}, {HRB}
    s_add_u32 s{sHr[2]}, s{sH}, {2*HRB}
    s_add_u32 s{sHr[3]}, s{sH}, {3*HRB}
    """)]
    TF = OPT.get("kvflag", 130)
    fl.append((TF, I(f"buffer_store_dword v{VONE}, v{VFL}, s[12:15], s{sHt} offen sc1", needs=[("ks", 1)])))
    load, check = polls.make(VPK, sCt, 0)
    TP = OPT.get("kvpoll", 215)
    fl.append((TP - 35, load))
    fl.append((TP, check))
    for mt in range(8):
        if mt:
            fl.append((TP, I(f"s_add_u32 s{sK}, s{sK}, 8192")))
        for j in range(2):
            fl.append((TP, I(f"buffer_load_dwordx4 {vr(VA+(mt*2+j)*4,4)}, v{VX}, s[12:15], s{sK} offen offset:{1024*j} sc1",
                             tok=("kp", mt, j))))
    for tg, it in fl:
        items.append((tg, 358, "va", it))
    place_vm(items, plan, pairslot)
    P += pre
    P += weave(slots, items, prio={"rd": 1000, "vm": 8}, report="att q")
    P += stamp(5)

    def fpairs(p):
        return [dict(hbase=sH2, hoff=(120 + 6 * j + 2 * p) * 1024, cbase=sC2, wrow=(120 + 6 * j + 2 * p) * 32, srd=28,
                     vw=VW2, stage=p) for j in range(4)]

    apairs = [dict(hbase=sH2, hoff=(144 + 2 * a) * 1024, cbase=sC2, wrow=72 * a, srd=56, vw=VW2, stage=3) for a in range(8)]
    apairs += [dict(hbase=sH2, hoff=160 * 1024, cbase=sC2, wrow=0, wstep=288, srd=56, vw=VW2L, stage=3)]
    pairs = fpairs(0) + fpairs(1) + apairs if A16 else fpairs(0) + apairs + fpairs(1) + fpairs(2)
    dn = Down(pairs, polls, 32, VS)
    pollargs = {0: (VPO, sPl, 0), 1: (VPO, sPl, 128), 2: (VPO, sPl, 256), 3: (VPO2, sPl, 384)}
    load0, check0 = polls.make(*pollargs[0])
    P.append(load0)

    SUM = 200
    for mt in range(8):
        for j in range(2):
            src = VA + (mt * 2 + j) * 4
            for d in range(4):
                o = SUM + j * 8 + d * 2
                nd = [("kp", mt, j)] if d == 0 else []
                if mt == 0:
                    P.append(I(f"v_lshlrev_b32 v{o}, 16, v{src+d}", needs=nd))
                    P.append(I(f"v_and_b32 v{o+1}, 0xffff0000, v{src+d}"))
                else:
                    P.append(I(f"v_lshlrev_b32 v{T0+(d&1)*2}, 16, v{src+d}", needs=nd))
                    P.append(I(f"v_and_b32 v{T0+(d&1)*2+1}, 0xffff0000, v{src+d}"))
                    P.append(I(f"v_add_f32 v{o}, v{o}, v{T0+(d&1)*2}"))
                    P.append(I(f"v_add_f32 v{o+1}, v{o+1}, v{T0+(d&1)*2+1}"))
    for j in range(4):
        P.append(I(f"ds_write_b128 v{RKL}, {vr(SUM+4*j,4)} offset:{1024*j}", lds=(SCR, SCR + 16384, "kv2")))
    P += L(f"""
    v_lshlrev_b32 v{VKL}, 4, v{VL}
    v_add_u32 v{VKL}, {SCR}, v{VKL}
    v_and_b32 v{VQL}, 48, v{VL}
    v_lshlrev_b32 v{VQL}, 4, v{VQL}
    v_add_u32 v{VQL}, {SCR}, v{VQL}
    """)
    P.append(Sync(vm=False))
    P.append(I("s_barrier"))
    RAW, KVF, ZF, ZPK = 184, 136, 184, 172
    for ti in range(13):
        P.append(I(f"ds_read_b128 {vr(RAW+4*ti,4)}, v{VKL} offset:{1024*ti}", tok=("t", ti), lds=(SCR, SCR + 16384, "kv2")))
    for dT in range(5):
        ti = KVT.index((dT, 4))
        P.append(I(f"ds_read_b128 {vr(RAW+52+4*dT,4)}, v{VQL} offset:{1024*ti}", tok=("z", dT), lds=(SCR, SCR + 16384, "kv2")))
    NW = NH = OPT.get("nwa", 6)
    early = check0[:]
    for i in range(NW):
        early += dn.w_items(i) + dn.h_items(i)
    pq = []
    for r in range(4):
        for c in range(3):
            y = tile(KA, 2 * c, r)
            z = tile(KA, 2 * c + 1, r) if c < 2 else None
            pq += phi(list(range(y, y + 4)) + (list(range(z, z + 4)) if z else []))
            pq += pack(y, y, z)
    k = len(check0)
    P += early[:k]
    step = max(1, len(pq) // (len(early) - k + 1))
    for j, it in enumerate(pq):
        P.append(it)
        if j % step == step - 1 and k < len(early):
            P.append(early[k])
            k += 1
    P += early[k:]
    P += stamp(6)
    present = {}
    for ti, (dT, eT) in enumerate(KVT[:13]):
        fi = AFR.index((eT, dT >> 1))
        pos = 4 * fi + 2 * (dT & 1)
        present[pos] = (dT, eT)
        P.append(I(f"v_cvt_pk_bf16_f32 v{KVF+pos}, v{RAW+4*ti}, v{RAW+4*ti+1}", needs=[("t", ti)]))
        P.append(I(f"v_cvt_pk_bf16_f32 v{KVF+pos+1}, v{RAW+4*ti+2}, v{RAW+4*ti+3}"))
    for dT in range(5):
        b = RAW + 52 + 4 * dT
        P.append(I(f"v_cvt_pk_bf16_f32 v{ZPK+2*dT}, v{b}, v{b+1}", needs=[("z", dT)]))
        P.append(I(f"v_cvt_pk_bf16_f32 v{ZPK+2*dT+1}, v{b+2}, v{b+3}"))
    k = 0
    pend = []
    for pos in range(0, 36, 2):
        if pos not in present:
            for e in range(2):
                P.append(I(f"v_mov_b32 v{KVF+pos+e}, 0"))
                P.append(I(f"v_mov_b32 v{ZF+pos+e}, 0"))
            continue
        dT, eT = present[pos]
        m0, m1 = 44 + 4 * (k % 2), 46 + 4 * (k % 2)
        k += 1
        P += L(f"""
        v_sub_u32 v{T0+4}, {16*dT}, v{VLO+eT}
        v_sub_u32 v{T0+5}, {16*dT+2}, v{VLO+eT}
        v_cmp_gt_u32 s[{m0}:{m0+1}], 18, v{T0+4}
        v_cmp_gt_u32 s[{m1}:{m1+1}], 18, v{T0+5}
        """)
        P += pend
        pend = []
        for e, m in enumerate((m0, m1)):
            pend.append(I(f"v_cndmask_b32 v{KVF+pos+e}, 0, v{KVF+pos+e}, s[{m}:{m+1}]"))
            pend.append(I(f"v_cndmask_b32 v{ZF+pos+e}, 0, v{ZPK+2*dT+e}, s[{m}:{m+1}]"))
    P += pend
    fr = [220 + 4 * i for i in range(9)] + [172, 176, 180] + [tile(KA, T, r) for T in (1, 3) for r in range(4)]
    sets = [fr[:10], fr[10:20]]
    P.append(I(f"v_mov_b32 v{VFL+2}, {f32(1e-6*LN2)}"))

    def omf(r):
        S = sets[r % 2]
        out = []
        seen = set()
        for fi, (eT, c) in enumerate(AFR):
            for z, F in enumerate((KVF, ZF)):
                d = S[2 * eT + z]
                out.append(mfma(d, vr(F + 4 * fi, 4), vr(tile(KA, 2 * c, r), 4), vr(d, 4) if (eT, z) in seen else "0"))
                seen.add((eT, z))
        return out

    def onorm(r):
        S = sets[r % 2]
        st3 = []
        for eT in range(5):
            n, d = S[2 * eT], S[2 * eT + 1]
            for e in range(4):
                st3.append([I(f"v_fma_f32 v{d+e}, v{d+e}, v{VFL+1}, v{VFL+2}"), I(f"v_rcp_f32 v{d+e}, v{d+e}"),
                            I(f"s_nop 0", cost=0) if False else I(f"v_mul_f32 v{n+e}, v{n+e}, v{d+e}")])
        out = pipeline(st3)
        for j in range(2):
            out += pack(S[4 * j], S[4 * j], S[4 * j + 2])
            out.append(I(f"buffer_store_dwordx4 {vr(S[4*j],4)}, v{VX}, s[12:15], s{sHr[r]} offen offset:{1024*j} sc1"))
        n = S[8]
        out += [I(f"v_cvt_pk_bf16_f32 v{n}, v{n}, v{n+1}"), I(f"v_cvt_pk_bf16_f32 v{n+1}, v{n+2}, v{n+3}")]
        out.append(I(f"buffer_store_dwordx2 {vr(n,2)}, v{VSO}, s[12:15], s{sHr[r]} offen sc1", tok=("os", r)))
        return out

    P += omf(0)
    for r in range(4):
        on = onorm(r)
        if r < 3:
            mm = omf(r + 1)
            per = len(on) // len(mm)
            for j, m in enumerate(mm):
                P.append(m)
                P += on[j * per:(j + 1) * per]
            P += on[len(mm) * per:]
        else:
            P += on
    oflag = f"buffer_store_dword v{VONE}, v{VFL}, s[12:15], s{sFl} offen offset:384 sc1"
    P += L(f"""
    s_cmp_lt_u32 s2, 48
    s_cbranch_scc1 att_down
    s_waitcnt vmcnt(0)
    """)
    P.append(I(oflag, count=False))
    P += L("""
    s_endpgm
    att_down:
    """)
    P += stamp(7)
    og = OPT.get("oflag", 28 if A16 else 8)
    s2, i2 = dn.build(0, NW, NH, pollargs, (3, og), 4, extra={og: ([], I(oflag, needs=[("os", 3)]))},
                      lead=OPT.get("lead2a", 3))
    P.append(dn.bar(0))
    for gi in range(AHEAD):
        P += dn.reads(gi)
    P += weave(s2, i2, report="att down")
    P += stamp(8)
    P += dn.tail
    P += stamp_dump(1, sW, last=9)
    return P, polls.slow


def k1():
    P = L(f"""
    s_cmp_ge_u32 s2, 256
    s_cbranch_scc1 k1_end
    """)
    P += stamp_init() + stamp(0)
    P += L(f"""
    s_load_dwordx4 s[4:7], s[0:1], 0
    s_load_dwordx2 s[54:55], s[0:1], 16
    s_load_dwordx8 s[44:51], s[0:1], 32
    s_load_dwordx4 s[56:59], s[0:1], 64
    """)
    P += L(f"""
    s_and_b32 s22, s2, 7
    s_lshr_b32 s23, s2, 3
    """)
    P += ln_addr1()
    P += L(f"""
    s_and_b32 s{sMt}, s22, 1
    s_lshl_b32 s{sMt}, s{sMt}, 2
    s_add_u32 s{sMt}, s{sMt}, s24
    s_lshr_b32 s22, s22, 1
    s_lshr_b32 s23, s23, 2
    """)
    P += lane_setup(VL, sW)
    P.append(I("s_waitcnt lgkmcnt(0)"))
    P += srd(64, 4, 2048 * 1152)
    P += ln_loads()
    P += code_prefetch("c")
    P += srd(72, 56, 256)
    if ROT:
        P += L(f"""
        s_add_u32 s{sRot}, s{sMt}, s23
        s_sub_u32 s24, s{sRot}, 9
        s_min_u32 s{sRot}, s{sRot}, s24
        """)
    else:
        P.append(I(f"s_mov_b32 s{sRot}, 0"))
    P += L(f"""
    s_or_b32 s24, s2, s{sW}
    s_cmp_lg_u32 s24, 0
    s_cbranch_scc1 no_tag
    s_memrealtime s[24:25]
    v_lshlrev_b32 v2, 8, v{VL}
    s_waitcnt lgkmcnt(0)
    s_or_b32 s24, s24, 1
    v_mov_b32 v3, s24
    """)
    P.append(I("buffer_store_dword v3, v2, s[72:75], 0 offen sc1", count=False))
    P.append(I("no_tag:"))
    P += srd(12, 58, WS_BYTES)
    P += L(f"""
    s_mul_i32 s{sG}, s22, 6
    s_add_u32 s{sG}, s{sG}, s23
    s_sub_u32 s{sG}, s{sG}, 2
    s_mul_i32 s{sCol}, s{sG}, 384
    s_lshl_b32 s22, s22, 1
    s_add_u32 s22, s22, s23
    s_mul_i32 s23, s22, 144
    s_add_u32 s23, s23, 1152
    s_movk_i32 s{sPitch}, 9216
    s_mov_b32 s10, {576*9216}
    s_cmp_lt_u32 s2, 64
    s_cselect_b32 s{sG}, s22, s{sG}
    s_cselect_b32 s{sCol}, s23, s{sCol}
    s_cselect_b32 s{sPitch}, 3456, s{sPitch}
    s_cselect_b32 s8, s6, s44
    s_cselect_b32 s9, s7, s45
    s_cselect_b32 s10, {576*3456}, s10
    s_and_b32 s9, s9, 0xffff
    s_mov_b32 s11, 0x20000
    v_mov_b32 v{VFO}, {BIG}
    v_cmp_eq_u32 vcc, 0, v{VL}
    v_cndmask_b32 v{VFO}, v{VFO}, 0, vcc
    """)
    slowc = []

    def cdma(gs):
        return wdma(gs, 1 << 20, 8, sT[gs >> 1], f"s{sPitch}" if gs & 1 else 0)

    SU = k1_common()
    SU += L(f"""
    s_lshl_b32 s60, s{sPitch}, 6
    s_lshl_b32 s{sPitch}, s{sPitch}, 5
    """)
    SU += rot_table(sT, sCol, "s60")
    if OPT.get("sue", 1):
        P += SU
    P += stamp(1, 1)
    P += L(f"""
    s_mov_b32 s5, s{sLn}
    s_cmp_lt_u32 s{sLn}, 128
    s_cbranch_scc1 do_ln
    """)
    for gs in range(NDC):
        for x in cdma(gs):
            P.append(I(x.text, count=False))
    P += L("""
    s_branch skip_ln
    do_ln:
    """)
    P += ln_block(slowc)
    P += stamp(3, 1)
    for gs in range(NDC):
        P += cdma(gs)
    P.append(I("skip_ln:"))
    P += srd(24, 46, 576 * 9216)
    P += srd(28, 48, 4608 * 1152)
    P += srd(68, 50, 2048 * 1152)
    P += srd(56, 54, 576 * 1152)
    P += rot_table(sXr, sX, 2048)
    P += ln_poll_addr(T0 + 7)
    P += read_bases(VL, RB, 3, T0)
    P += L("""
    s_cmp_lt_u32 s2, 64
    s_cbranch_scc1 k1_att
    """)
    F = []
    body, slowf = ffn()
    F += body
    F.append(I("k1_end:"))
    F.append(I("s_endpgm"))
    A = [I("k1_att:")]
    body, slowa = att()
    A += body
    A.append(I("s_endpgm"))
    return P, F, slowc + slowf, A, slowa


HEADER = open("cdna_kernels/%s.s.ref" % NAME).read().split("; Override launch")[0]


def kd(name, vgpr, accum, sgpr=64):
    if STAMP:
        sgpr = 102
    return f""".p2align 6
.amdhsa_kernel {name}
  .amdhsa_next_free_vgpr {vgpr}
  .amdhsa_next_free_sgpr {sgpr}
  .amdhsa_accum_offset {accum}
  .amdhsa_group_segment_fixed_size 0
  .amdhsa_kernarg_size 80
  .amdhsa_user_sgpr_count 2
  .amdhsa_user_sgpr_kernarg_segment_ptr 1
  .amdhsa_system_sgpr_workgroup_id_x 1
  .amdhsa_float_denorm_mode_32 3
.end_amdhsa_kernel
"""


def main():
    out = HEADER
    out += "; @launch grid=(256,1,1) block=(256,1,1) lds=163840\n"
    out += '.amdgcn_target "amdgcn-amd-amdhsa--gfx950"\n.text\n'
    out += f".globl {KNAME}\n.p2align 8\n.type {KNAME},@function\n{KNAME}:\n"
    P, F, slowf, A, slowa = k1()
    tP, _, nP = finish(list(P))
    for body in (F, None, A, None):
        pass
    tF, pads, n = finish(P + F)
    print("ffn instrs", n, "pads", pads, file=sys.stderr)
    assert tF.startswith(tP)
    tA, pads, n = finish(P + A)
    print("att instrs", n, "pads", pads, file=sys.stderr)
    assert tA.startswith(tP)
    out += tF + finish(slowf)[0] + tA[len(tP):] + finish(slowa)[0]
    out += "code_end:\n"
    out += '.section .rodata,"a"\n'
    out += kd(KNAME, 512, 256, 80)
    dst = "cdna_kernels/%s.s" % NAME
    for a in sys.argv[1:]:
        if a.endswith(".s"):
            dst = a
    open(dst, "w").write(out)
    print("wrote", dst, len(out), "bytes", file=sys.stderr)


if __name__ == "__main__":
    main()
```
